```python
import torch

def _softmax(x, axis=-1):
    return torch.softmax(x, dim=axis)
def _gelu(x):
    return torch.nn.functional.gelu(x, approximate="tanh")
def _silu(x):
    return torch.nn.functional.silu(x)
def _sigmoid(x):
    return torch.sigmoid(x)
def _layernorm(x, axis=-1, eps=1e-5):
    m = x.mean(dim=axis, keepdim=True)
    v = x.var(dim=axis, keepdim=True, unbiased=False)
    return (x - m) / torch.sqrt(v + eps)
def _scatter_add(tgt, idx, src, axis=0):
    return tgt.clone().index_add_(axis, idx, src)
def _segment_sum(src, seg, n):
    out = torch.zeros((n,) + src.shape[1:], dtype=src.dtype)
    return out.index_add_(0, seg, src)
def _pad(x, pw):
    flat = tuple(v for pair in reversed(pw) for v in pair)
    return torch.nn.functional.pad(x, flat)

kernel_name = 'recurrent_scan__mha_block_cached__dense_activation_relu__decode'

def setup_inputs():

    _w = (lambda a: (lambda t: t.to(torch.bfloat16) if t.is_floating_point() else t)(torch.as_tensor(a)))
    def _A_setup():
        B, Sq, D = 4, 1, 640
        H, Sk, Dh = 32, 4096, 192
        return {
            "x": _w((lambda *s: torch.randn(*s, dtype=torch.bfloat16) * 0.05)(B, Sq, D)),
            "k_cache": _w((lambda *s: torch.randn(*s, dtype=torch.bfloat16) * 1.6)(B, H, Sk, Dh)),
            "v_cache": _w((lambda *s: torch.randn(*s, dtype=torch.bfloat16) * 0.2)(B, H, Sk, Dh)),
            "wq": _w((lambda *s: torch.randn(*s, dtype=torch.bfloat16) * 1.6)(D, H * Dh) * (D ** -0.5)),
            "wo": _w((lambda *s: torch.randn(*s, dtype=torch.bfloat16) * 0.2)(H * Dh, D) * ((H * Dh) ** -0.5)),
        }
    _A_in = _A_setup()

    def _B_setup():
        B, S, D, Dff = 4, 1, 640, 1536
        return {
            "x": _w((lambda *s: torch.randn(*s, dtype=torch.bfloat16) * 0.05)(B, S, D)),
            "w1": _w((lambda *s: torch.randn(*s, dtype=torch.bfloat16) * 0.1)(D, Dff)),
            "w2": _w((lambda *s: torch.randn(*s, dtype=torch.bfloat16) * 0.1)(Dff, D)),
        }
    _B_in = _B_setup()

    return {
        "A_x": _A_in["x"],
        "A_k_cache": _A_in["k_cache"],
        "A_v_cache": _A_in["v_cache"],
        "A_wq": _A_in["wq"],
        "A_wo": _A_in["wo"],
        "B_x": _B_in["x"],
        "B_w1": _B_in["w1"],
        "B_w2": _B_in["w2"],
    }

def reference(A_x, A_k_cache, A_v_cache, A_wq, A_wo, B_x, B_w1, B_w2):
    def _A_ref(x, k_cache, v_cache, wq, wo):
        B, Sq, D = x.shape
        H, Dh = 32, 192
        q = (lambda x, *d: x.permute(*d))((x @ wq).reshape(B, Sq, H, Dh), 0, 2, 1, 3)
        scores = torch.einsum("bhqd,bhkd->bhqk", q, k_cache) * (Dh ** -0.5)
        p = _softmax(scores, axis=-1)
        o = torch.einsum("bhqk,bhkd->bhqd", p, v_cache)
        return (lambda x, *d: x.permute(*d))(o, 0, 2, 1, 3).reshape(B, Sq, H * Dh) @ wo

    def _B_ref(x, w1, w2):
        h = torch.einsum("bsd,df->bsf", x, w1)
        zero = torch.zeros_like(h)
        h = torch.maximum(h, zero)
        return torch.einsum("bsf,fd->bsd", h, w2)

    x = A_x
    xn = _layernorm(x, axis=-1)
    s = _A_ref(xn, A_k_cache, A_v_cache, A_wq, A_wo)
    g = _silu(_B_ref(xn, B_w1, B_w2))
    return x + s * g
```

```python
import sys, json, struct

KNAME = "recurrent_scan__mha_block_cached__dense_activation_relu__decode_kernel"

def f32(x):
    return "0x%08x" % struct.unpack("<I", struct.pack("<f", x))[0]

WS_E   = 0
WS_QX  = 0x1000
WS_OX  = 0x80000
WS_YX  = 0xC0000
WS_END = 0x128000
WS_DBG = 0x200000
L_T   = 0
L_XN  = 49152
XNP   = 1344
L_QB  = L_XN + 4*XNP
L_OW  = L_QB + 512
L_ML  = L_OW + 4*768
L_OB  = L_ML + 64
OBP   = 448
L_END = L_OB + 4*OBP

class Gen:
    def __init__(self, **kw):
        self.o = []
        self.cfg = dict(stamps=False, lds=81920+1024, kname=KNAME, pol="nt", spin=1<<20)
        self.cfg.update(kw)
        self.nst = 0
        self.rare = []
    def A(self, s):
        self.o.append("  " + s)
    def L(self, s):
        self.o.append(s + ":")
    def C(self, s):
        self.o.append("  ; " + s)
    def stamp(self, name):
        if not self.cfg["stamps"]: return
        k = self.nst; self.nst += 1
        self.A(f"s_memrealtime s[96:97]")
        self.A("s_waitcnt lgkmcnt(0)")
        self.A(f"v_writelane_b32 v{V_ST}, s96, {k}")

V_TID=0; V_KOFF=1; V_T2E=2; V_T2O=3; V_LANE=4; V_M=5; V_L=6; V_S0=7; V_S1=8; V_T=9; V_U=10
V_P0L=11; V_P0H=12; V_P1L=13; V_P1H=14; V_ST=15
V_PA=16; V_TAG=17; V_A2=18; V_A3=19
V_PD=20
V_Q=24
V_ACC=36
V_U0=60
V_X0=108; V_X1=156
V_END=204
S_W=3
S_K=28; S_V=32; S_T1=36; S_T2=40; S_X=44; S_WS=48; S_OUT=52; S_P1=56
S_UOFF=60; S_CNT=61; S_TAG=62; S_E=63; S_PITCH=64; S_TMP=65
S_SOFF=76; S_H=77; S_B=78; S_SPIN=79
S_SEL0=80
S_SELA=84; S_SELB=85; S_MSK=86
S_RB=87; S_C2=88

def build(**kw):
    g = Gen(**kw); A = g.A; L = g.L; C = g.C; cfg = g.cfg
    pol = cfg["pol"]
    name = cfg["kname"]
    o = g.o
    o.append(f"; @launch grid=(256,1,1) block=(256,1,1) lds={cfg['lds']}")
    o.append('.amdgcn_target "amdgcn-amd-amdhsa--gfx950"')
    o.append(".text")
    o.append(f".globl {name}")
    o.append(".p2align 8")
    o.append(f".type {name},@function")
    o.append(f"{name}:")
    A("s_cmp_ge_u32 s2, 256")
    A("s_cbranch_scc1 L_end")
    A("s_load_dwordx16 s[4:19], s[0:1], 0")
    A("s_load_dwordx4 s[20:23], s[0:1], 64")
    A("s_load_dwordx2 s[24:25], s[0:1], 80")
    if cfg["stamps"]:
        A("s_memrealtime s[98:99]")
        A(f"v_mov_b32 v{V_ST}, 0")
    A(f"v_lshrrev_b32 v{V_T}, 6, v0")
    A(f"v_and_b32 v{V_LANE}, 63, v0")
    A(f"v_readfirstlane_b32 s{S_W}, v{V_T}")
    C("phase-1 tile role: cb = wg>>1, kh = wg&1")
    A(f"s_lshr_b32 s65, s2, 1")
    A(f"s_and_b32 s66, s2, 1")
    A(f"s_cmp_lt_u32 s65, 96")
    A(f"s_movk_i32 s{S_PITCH}, 3072")
    A(f"s_cselect_b32 s{S_PITCH}, 12288, s{S_PITCH}")
    A(f"s_cselect_b32 s67, 0, 96")
    A(f"s_sub_u32 s67, s65, s67")
    A(f"s_lshl_b32 s67, s67, 7")
    A(f"s_mul_i32 s68, s66, 320")
    A(f"s_mul_i32 s68, s68, s{S_PITCH}")
    A(f"s_add_u32 s67, s67, s68")
    A(f"s_mul_i32 s69, s{S_PITCH}, 319")
    A(f"s_add_u32 s69, s69, 128")
    C("lane offsets")
    A(f"v_lshrrev_b32 v{V_T}, 3, v{V_LANE}")
    A(f"v_and_b32 v{V_U}, 7, v{V_LANE}")
    A(f"v_mul_u32_u24 v{V_KOFF}, 384, v{V_T}")
    A(f"v_lshl_add_u32 v{V_KOFF}, v{V_U}, 4, v{V_KOFF}")
    A(f"v_and_b32 v{V_S0}, 6, v{V_T}")
    A(f"v_xor_b32 v{V_S0}, v{V_S0}, v{V_U}")
    A(f"v_mul_lo_u32 v{V_PA}, s{S_PITCH}, v{V_T}")
    A(f"v_lshl_add_u32 v{V_PA}, v{V_S0}, 4, v{V_PA}")
    A(f"v_lshlrev_b32 v{V_A2}, 4, v{V_LANE}")
    A(f"v_lshlrev_b32 v{V_A3}, 2, v{V_LANE}")
    A(f"s_mul_i32 s70, s{S_W}, 1280")
    A(f"s_mul_i32 s71, s2, {256*3072}")
    A(f"s_mul_i32 s{S_UOFF}, s{S_W}, 6144")
    A(f"s_mul_i32 s{S_SOFF}, s{S_W}, 80")
    A(f"s_mul_i32 s{S_SOFF}, s{S_SOFF}, s{S_PITCH}")
    A(f"s_mul_i32 s72, s{S_W}, 10240")
    A(f"s_lshl_b32 s73, s{S_PITCH}, 3")
    A(f"s_mov_b32 s{S_X+2}, 5120")
    A(f"s_mov_b32 s{S_X+3}, 0x00020000")
    A(f"s_mov_b32 s{S_T1+3}, 0x00020000")
    A(f"s_mov_b32 s{S_K+2}, {256*3072}")
    A(f"s_mov_b32 s{S_K+3}, 0x00020000")
    A(f"s_mov_b32 s{S_V+2}, {256*3072}")
    A(f"s_mov_b32 s{S_V+3}, 0x00020000")
    A(f"s_cmp_lt_u32 s2, 240")
    A(f"s_cselect_b32 s{S_T1+2}, s69, 0")
    A(f"s_cselect_b32 s{S_P1+2}, {WS_END}, 0")
    A(f"s_cmp_lt_u32 s65, 96")
    A("s_waitcnt lgkmcnt(0)")
    A(f"s_cselect_b32 s{S_T1}, s10, s16")
    A(f"s_cselect_b32 s{S_T1+1}, s11, s17")
    A(f"s_mov_b32 s{S_X}, s4")
    A(f"s_mov_b32 s{S_X+1}, s5")
    XR = V_X1
    A(f"buffer_load_dwordx4 v[{XR}:{XR+3}], v{V_A2}, s[{S_X}:{S_X+3}], s70 offen")
    A(f"buffer_load_dword v{XR+4}, v{V_A3}, s[{S_X}:{S_X+3}], s70 offen offset:1024")
    A(f"s_add_u32 s{S_T1}, s{S_T1}, s67")
    A(f"s_addc_u32 s{S_T1+1}, s{S_T1+1}, 0")
    A(f"s_mov_b32 m0, s72")
    A(f"s_load_dword s{S_E}, s[24:25], {WS_E}")
    for t in range(10):
        A(f"buffer_load_dwordx4 v{V_PA}, s[{S_T1}:{S_T1+3}], s{S_SOFF} offen {pol} lds")
        if t < 9:
            A(f"s_add_u32 m0, m0, 1024")
            A(f"s_add_u32 s{S_SOFF}, s{S_SOFF}, s73")
    A(f"s_add_u32 s{S_K}, s6, s71")
    A(f"s_addc_u32 s{S_K+1}, s7, 0")
    A(f"s_add_u32 s{S_V}, s8, s71")
    A(f"s_addc_u32 s{S_V+1}, s9, 0")
    def ld_group(base, k):
        srd = S_K if k < 2 else S_V
        for j in range(3):
            r = base + 12*k + 4*j
            A(f"buffer_load_dwordx4 v[{r}:{r+3}], v{V_KOFF}, s[{srd}:{srd+3}], s{S_UOFF} offen offset:{3072*(k&1)+128*j} {pol}")
    def next_unit():
        A(f"s_add_u32 s{S_UOFF}, s{S_UOFF}, {4*6144}")
    C("remaining descriptors")
    A(f"s_mov_b32 s{S_WS}, s24")
    A(f"s_mov_b32 s{S_WS+1}, s25")
    A(f"s_mov_b32 s{S_WS+2}, {WS_END if not cfg['stamps'] else WS_DBG + 256*1024}")
    A(f"s_mov_b32 s{S_WS+3}, 0x00020000")
    A(f"s_mov_b32 s{S_P1}, s24")
    A(f"s_mov_b32 s{S_P1+1}, s25")
    A(f"s_mov_b32 s{S_P1+3}, 0x00020000")
    A(f"s_and_b32 s{S_H}, s65, 31")
    A(f"s_lshr_b32 s{S_B}, s65, 5")
    g.stamp("issued T1")
    C("---- layernorm of batch w ----")
    A("s_waitcnt vmcnt(10)")
    g.stamp("x landed")
    ld_group(V_U0, 0)
    E = XR + 8
    for k in range(5):
        A(f"v_lshlrev_b32 v{E+2*k}, 16, v{XR+k}")
        A(f"v_and_b32 v{E+2*k+1}, 0xffff0000, v{XR+k}")
    def allreduce_add(v, t):
        for ctl in ("quad_perm:[1,0,3,2]", "quad_perm:[2,3,0,1]", "row_half_mirror", "row_mirror"):
            A("s_nop 1")
            A(f"v_add_f32_dpp v{v}, v{v}, v{v} {ctl} row_mask:0xf bank_mask:0xf")
        for sw in ("v_permlane16_swap_b32", "v_permlane32_swap_b32"):
            A(f"v_mov_b32 v{t}, v{v}")
            A("s_nop 1")
            A(f"{sw} v{v}, v{t}")
            A("s_nop 1")
            A(f"v_add_f32 v{v}, v{v}, v{t}")
    S = XR + 20; T = XR + 21; MU = XR + 22; D = XR + 24
    A(f"v_add_f32 v{S}, v{E}, v{E+1}")
    for k in range(2, 10):
        A(f"v_add_f32 v{S}, v{S}, v{E+k}")
    allreduce_add(S, T)
    A(f"v_mul_f32 v{MU}, {f32(1/640.)}, v{S}")
    ld_group(V_U0, 1)
    for k in range(10):
        A(f"v_sub_f32 v{D+k}, v{E+k}, v{MU}")
    A(f"v_mul_f32 v{S}, v{D}, v{D}")
    for k in range(1, 10):
        A(f"v_fmac_f32 v{S}, v{D+k}, v{D+k}")
    allreduce_add(S, T)
    A(f"v_mul_f32 v{S}, {f32(1/640.)}, v{S}")
    A(f"v_cvt_pk_bf16_f32 v{T}, v{MU}, v{S}")
    A(f"v_lshlrev_b32 v{MU}, 16, v{T}")
    A(f"v_and_b32 v{S}, 0xffff0000, v{T}")
    A(f"v_add_f32 v{S}, {f32(1e-5)}, v{S}")
    A(f"v_cvt_pk_bf16_f32 v{T}, v{S}, v{S}")
    A(f"v_and_b32 v{S}, 0xffff0000, v{T}")
    A(f"v_sqrt_f32 v{S}, v{S}")
    for k in range(10):
        A(f"v_sub_f32 v{D+k}, v{E+k}, v{MU}")
    A(f"v_cvt_pk_bf16_f32 v{T}, v{S}, v{S}")
    A(f"v_and_b32 v{S}, 0xffff0000, v{T}")
    A(f"v_rcp_f32 v{T}, v{S}")
    for k in range(5):
        A(f"v_cvt_pk_bf16_f32 v{XR+k}, v{D+2*k}, v{D+2*k+1}")
    for k in range(5):
        A(f"v_lshlrev_b32 v{D+2*k}, 16, v{XR+k}")
        A(f"v_and_b32 v{D+2*k+1}, 0xffff0000, v{XR+k}")
    C("quotient with one Newton correction: q = d*r; q += (d - q*s)*r")
    for k in range(10):
        A(f"v_mul_f32 v{E+k}, v{D+k}, v{T}")
    for k in range(10):
        A(f"v_fma_f32 v{D+k}, -v{E+k}, v{S}, v{D+k}")
    for k in range(10):
        A(f"v_fmac_f32 v{E+k}, v{D+k}, v{T}")
    for k in range(5):
        A(f"v_cvt_pk_bf16_f32 v{XR+k}, v{E+2*k}, v{E+2*k+1}")
    A(f"s_mul_i32 s70, s{S_W}, {XNP}")
    A(f"v_add_u32 v{V_A2}, s70, v{V_A2}")
    A(f"v_add_u32 v{V_A3}, s70, v{V_A3}")
    A(f"ds_write_b128 v{V_A2}, v[{XR}:{XR+3}] offset:{L_XN}")
    A(f"ds_write_b32 v{V_A3}, v{XR+4} offset:{L_XN+1024}")
    ld_group(V_U0, 2)
    ld_group(V_U0, 3)
    next_unit()
    C("---- phase 1 projection: D[col][batch] ----")
    A(f"v_lshrrev_b32 v{V_T}, 4, v{V_LANE}")
    A(f"v_bfe_u32 v{V_U}, v{V_LANE}, 2, 2")
    A(f"v_lshl_add_u32 v{V_S0}, v{V_T}, 2, v{V_U}")
    A(f"v_bfe_u32 v{V_S1}, v{V_S0}, 1, 2")
    A(f"v_xor_b32 v{V_S1}, s{S_W}, v{V_S1}")
    A(f"v_lshlrev_b32 v{V_S1}, 5, v{V_S1}")
    A(f"v_lshl_add_u32 v{V_S1}, v{V_S0}, 7, v{V_S1}")
    A(f"v_and_b32 v{V_U}, 3, v{V_LANE}")
    A(f"v_lshl_add_u32 v{V_A2}, v{V_U}, 3, v{V_S1}")
    A(f"v_mul_u32_u24 v{V_A3}, {XNP}, v{V_U}")
    A(f"v_lshl_add_u32 v{V_A3}, v{V_T}, 3, v{V_A3}")
    A(f"s_mul_i32 s70, s66, 640")
    A(f"s_add_u32 s70, s70, {L_XN}")
    A(f"v_add_u32 v{V_A3}, s70, v{V_A3}")
    C("publish address: QX + tile*2048 + batch*512 + w*128 + g*32 + (j>>2)*16")
    A(f"v_lshlrev_b32 v{V_PA}, 9, v{V_U}")
    A(f"v_lshl_add_u32 v{V_PA}, v{V_T}, 5, v{V_PA}")
    A(f"v_and_b32 v{V_S0}, 4, v{V_LANE}")
    A(f"v_lshl_add_u32 v{V_PA}, v{V_S0}, 2, v{V_PA}")
    A(f"s_lshl_b32 s70, s2, 11")
    A(f"s_lshl_b32 s71, s{S_W}, 7")
    A(f"s_add_u32 s70, s70, s71")
    A(f"s_add_u32 s70, s70, {WS_QX}")
    A(f"v_cmp_ne_u32 vcc, 0, v{V_S0}")
    A("s_waitcnt vmcnt(12) lgkmcnt(0)")
    A(f"s_add_u32 s{S_TAG}, s{S_E}, 0x01010101")
    A("s_barrier")
    g.stamp("T1 landed")
    WA = V_X0; XB = V_X0 + 40
    for s in range(10):
        A(f"ds_read_b64_tr_b16 v[{WA+4*s}:{WA+4*s+1}], v{V_A2} offset:{L_T+4096*s}")
        A(f"ds_read_b64_tr_b16 v[{WA+4*s+2}:{WA+4*s+3}], v{V_A2} offset:{L_T+4096*s+2048}")
        A(f"ds_read2_b64 v[{XB+4*s}:{XB+4*s+3}], v{V_A3} offset0:{8*s} offset1:{8*s+4}")
        if s >= 4:
            A(f"s_waitcnt lgkmcnt(12)")
            m = s - 4
            A(f"v_mfma_f32_16x16x32_bf16 v[{V_PD}:{V_PD+3}], v[{WA+4*m}:{WA+4*m+3}], v[{XB+4*m}:{XB+4*m+3}], " + ("0" if m == 0 else f"v[{V_PD}:{V_PD+3}]"))
    for m in range(6, 10):
        A(f"s_waitcnt lgkmcnt({3*(9-m)})")
        A(f"v_mfma_f32_16x16x32_bf16 v[{V_PD}:{V_PD+3}], v[{WA+4*m}:{WA+4*m+3}], v[{XB+4*m}:{XB+4*m+3}], v[{V_PD}:{V_PD+3}]")
    A(f"v_mov_b32 v{V_TAG}, s{S_TAG}")
    A(f"v_mov_b32 v{V_Q+1}, s{S_TAG}")
    A(f"v_mov_b32 v{V_Q+3}, s{S_TAG}")
    A("s_mov_b32 exec_lo, 0x00ff00ff")
    A("s_mov_b32 exec_hi, 0x00ff00ff")
    A("s_nop 3")
    A(f"v_cndmask_b32 v{V_Q}, v{V_PD}, v{V_PD+2}, vcc")
    A(f"v_cndmask_b32 v{V_Q+2}, v{V_PD+1}, v{V_PD+3}, vcc")
    A(f"buffer_store_dwordx4 v[{V_Q}:{V_Q+3}], v{V_PA}, s[{S_P1}:{S_P1+3}], s70 offen sc1")
    A("s_mov_b64 exec, -1")
    g.stamp("published q part")
    for k in range(4): ld_group(V_X0, k)
    next_unit()
    C("---- gather q partials: lane<48: seg=l>>3, QX + (6h+seg)*2048 + b*512 + w*128 + (l&7)*16 ----")
    A(f"v_lshrrev_b32 v{V_T}, 3, v{V_LANE}")
    A(f"v_min_u32 v{V_T}, 5, v{V_T}")
    A(f"v_and_b32 v{V_U}, 7, v{V_LANE}")
    A(f"v_lshlrev_b32 v{V_PA}, 11, v{V_T}")
    A(f"v_lshl_add_u32 v{V_PA}, v{V_U}, 4, v{V_PA}")
    A(f"s_mul_i32 s70, s{S_H}, {6*2048}")
    A(f"s_lshl_b32 s72, s{S_B}, 9")
    A(f"s_add_u32 s70, s70, s72")
    A(f"s_add_u32 s70, s70, s71")
    A(f"s_add_u32 s70, s70, {WS_QX}")
    A(f"buffer_load_dwordx4 v[{V_PD}:{V_PD+3}], v{V_PA}, s[{S_WS}:{S_WS+3}], s70 offen sc1")
    for k in range(4): ld_group(V_X1, k)
    next_unit()
    C("LDS address for packed q: 128*(seg>>1) + 32*w + 4*(l&7)")
    A(f"v_lshrrev_b32 v{V_T}, 1, v{V_T}")
    A(f"v_lshlrev_b32 v{V_A2}, 7, v{V_T}")
    A(f"v_lshl_add_u32 v{V_A2}, v{V_U}, 2, v{V_A2}")
    A(f"s_lshl_b32 s72, s{S_W}, 5")
    A(f"v_add_u32 v{V_A2}, s72, v{V_A2}")
    A(f"v_lshlrev_b32 v{V_A3}, 4, v{V_U}")
    A(f"s_mov_b32 s{S_SPIN}, {cfg['spin']}")
    for k in range(24):
        A(f"v_mov_b32 v{V_ACC+k}, 0")
    A(f"v_mov_b32 v{V_M}, 0xff7f0000")
    A(f"v_mov_b32 v{V_L}, 0")
    A("s_waitcnt vmcnt(12)")
    g.stamp("q poll 1 back")
    L("L_qchk")
    A(f"v_cmp_ne_u32 vcc, v{V_PD+1}, v{V_TAG}")
    A(f"v_cmp_ne_u32 s[66:67], v{V_PD+3}, v{V_TAG}")
    A("s_nop 1")
    A("s_or_b64 vcc, vcc, s[66:67]")
    A("s_cbranch_vccz L_qok")
    A(f"s_sub_u32 s{S_SPIN}, s{S_SPIN}, 1")
    A("s_cbranch_scc1 L_end")
    A(f"buffer_load_dwordx4 v[{V_PD}:{V_PD+3}], v{V_PA}, s[{S_WS}:{S_WS+3}], s70 offen sc1")
    A("s_waitcnt vmcnt(0)")
    A("s_branch L_qchk")
    L("L_qok")
    A(f"v_add_f32_dpp v{V_PD}, v{V_PD}, v{V_PD} row_ror:8 row_mask:0xf bank_mask:0xf")
    A(f"v_add_f32_dpp v{V_PD+2}, v{V_PD+2}, v{V_PD+2} row_ror:8 row_mask:0xf bank_mask:0xf")
    A("s_mov_b32 exec_hi, 0x0000ffff")
    A(f"v_cvt_pk_bf16_f32 v{V_T}, v{V_PD}, v{V_PD+2}")
    A(f"ds_write_b32 v{V_A2}, v{V_T} offset:{L_QB}")
    A("s_mov_b32 exec_hi, -1")
    A("s_waitcnt lgkmcnt(0)")
    A("s_barrier")
    for j in range(3):
        A(f"ds_read_b128 v[{V_Q+4*j}:{V_Q+4*j+3}], v{V_A3} offset:{L_QB+128*j}")
    C("phase-2 tile role while waiting: rb = wg/5, c2 = wg%5")
    A(f"s_mul_i32 s{S_RB}, s2, 52429")
    A(f"s_lshr_b32 s{S_RB}, s{S_RB}, 18")
    A(f"s_mul_i32 s66, s{S_RB}, 5")
    A(f"s_sub_u32 s{S_C2}, s2, s66")
    A(f"s_cmp_lt_u32 s{S_RB}, 32")
    A(f"s_cselect_b32 s{S_T2}, s12, s18")
    A(f"s_cselect_b32 s{S_T2+1}, s13, s19")
    A(f"s_and_b32 s66, s{S_RB}, 31")
    A(f"s_mul_i32 s66, s66, {192*1280}")
    A(f"s_lshl_b32 s67, s{S_C2}, 8")
    A(f"s_add_u32 s66, s66, s67")
    A(f"s_cmp_lt_u32 s2, 200")
    A(f"s_cselect_b32 s{S_T2+2}, {191*1280+256}, 0")
    A(f"s_cselect_b32 s66, s66, 0")
    A(f"s_add_u32 s{S_T2}, s{S_T2}, s66")
    A(f"s_addc_u32 s{S_T2+1}, s{S_T2+1}, 0")
    A(f"s_mov_b32 s{S_T2+3}, 0x00020000")
    A(f"v_lshrrev_b32 v{V_T}, 4, v{V_LANE}")
    A(f"v_bfe_u32 v{V_U}, v{V_LANE}, 1, 3")
    A(f"v_xor_b32 v{V_U}, v{V_U}, v{V_T}")
    A(f"v_mul_u32_u24 v{V_T2E}, 1280, v{V_T}")
    A(f"v_lshl_add_u32 v{V_T2E}, v{V_U}, 5, v{V_T2E}")
    A(f"v_and_b32 v{V_U}, 1, v{V_LANE}")
    A(f"v_lshl_add_u32 v{V_T2E}, v{V_U}, 4, v{V_T2E}")
    A(f"v_xor_b32 v{V_T2O}, 128, v{V_T2E}")
    A("s_waitcnt lgkmcnt(0)")
    g.stamp("q ready")

    t2n = [0]
    def t2_group():
        for j in range(3):
            t = t2n[0]; t2n[0] += 1
            if t == 0:
                A(f"s_mul_i32 s66, s{S_W}, {48*256}")
                A(f"s_add_u32 m0, s66, {L_T}")
                A(f"s_mul_i32 s{S_SOFF}, s{S_W}, {48*1280}")
            else:
                A(f"s_add_u32 m0, m0, 1024")
                A(f"s_add_u32 s{S_SOFF}, s{S_SOFF}, {4*1280}")
            A(f"buffer_load_dwordx4 v{V_T2O if t & 1 else V_T2E}, s[{S_T2}:{S_T2+3}], s{S_SOFF} offen {pol} lds")

    def proc(tag, base, waits, reissue):
        def re(k):
            if reissue == "ring": ld_group(base, k)
            elif reissue == "t2": t2_group()
        for k, sv in ((0, V_S0), (1, V_S1)):
            A(f"v_mov_b32 v{sv}, 0")
            if waits[k] is not None: A(f"s_waitcnt vmcnt({waits[k]})")
            for e in range(12):
                A(f"v_dot2c_f32_bf16 v{sv}, v{base+12*k+e}, v{V_Q+e}")
            re(k)
        if not reissue: A("s_nop 2")
        for n, ctl in enumerate(("quad_perm:[1,0,3,2]", "quad_perm:[2,3,0,1]", "row_half_mirror")):
            A(f"v_add_f32_dpp v{V_S0}, v{V_S0}, v{V_S0} {ctl} row_mask:0xf bank_mask:0xf")
            A(f"v_add_f32_dpp v{V_S1}, v{V_S1}, v{V_S1} {ctl} row_mask:0xf bank_mask:0xf")
            if n < 2: A("s_nop 0")
        A(f"v_cvt_pk_bf16_f32 v{V_T}, v{V_S0}, v{V_S1}")
        A(f"v_lshlrev_b32 v{V_S0}, 16, v{V_T}")
        A(f"v_and_b32 v{V_S1}, 0xffff0000, v{V_T}")
        A(f"v_mul_f32 v{V_S0}, {f32(192**-0.5)}, v{V_S0}")
        A(f"v_mul_f32 v{V_S1}, {f32(192**-0.5)}, v{V_S1}")
        A(f"v_cvt_pk_bf16_f32 v{V_T}, v{V_S0}, v{V_S1}")
        A(f"v_lshlrev_b32 v{V_S0}, 16, v{V_T}")
        A(f"v_and_b32 v{V_S1}, 0xffff0000, v{V_T}")
        A(f"v_max_f32 v{V_T}, v{V_S0}, v{V_S1}")
        A(f"v_cmp_gt_f32 vcc, v{V_T}, v{V_M}")
        A("s_nop 1")
        A(f"s_cbranch_vccnz L_rare_{tag}")
        L(f"L_back_{tag}")
        g.rare.append(tag)
        A(f"v_sub_f32 v{V_S0}, v{V_S0}, v{V_M}")
        A(f"v_sub_f32 v{V_S1}, v{V_S1}, v{V_M}")
        A(f"v_mul_f32 v{V_S0}, {f32(1.4426950408889634)}, v{V_S0}")
        A(f"v_mul_f32 v{V_S1}, {f32(1.4426950408889634)}, v{V_S1}")
        A(f"v_exp_f32 v{V_S0}, v{V_S0}")
        A(f"v_exp_f32 v{V_S1}, v{V_S1}")
        A(f"v_add_f32 v{V_L}, v{V_L}, v{V_S0}")
        A(f"v_cvt_pk_bf16_f32 v{V_T}, v{V_S0}, v{V_S1}")
        A(f"v_add_f32 v{V_L}, v{V_L}, v{V_S1}")
        A(f"v_and_b32 v{V_P0L}, 0xffff, v{V_T}")
        A(f"v_lshlrev_b32 v{V_P0H}, 16, v{V_T}")
        A(f"v_lshrrev_b32 v{V_P1L}, 16, v{V_T}")
        A(f"v_and_b32 v{V_P1H}, 0xffff0000, v{V_T}")
        for k, (pl, ph) in ((2, (V_P0L, V_P0H)), (3, (V_P1L, V_P1H))):
            if waits[k] is not None: A(f"s_waitcnt vmcnt({waits[k]})")
            for e in range(12):
                A(f"v_dot2c_f32_bf16 v{V_ACC+2*e}, v{base+12*k+e}, v{pl}")
                A(f"v_dot2c_f32_bf16 v{V_ACC+2*e+1}, v{base+12*k+e}, v{ph}")
            re(k)
        if reissue == "ring": next_unit()

    C("---- attention units ----")
    proc("u0", V_U0, [None]*4, "ring")
    proc("x0", V_X0, [None]*4, None)
    proc("x1", V_X1, [21, 18, 15, 12], None)
    g.stamp("extras done")
    A(f"s_mov_b32 s{S_CNT}, 28")
    L("L_loop")
    proc("lp", V_U0, [9]*4, "ring")
    A(f"s_sub_u32 s{S_CNT}, s{S_CNT}, 1")
    A(f"s_cmp_lg_u32 s{S_CNT}, 0")
    A("s_cbranch_scc1 L_loop")
    g.stamp("loop done")
    proc("tl", V_U0, [9]*4, "t2")
    g.stamp("last unit done")
    C("---- wave reduction over the 8 lane groups ----")
    A(f"v_add_f32_dpp v{V_L}, v{V_L}, v{V_L} row_ror:8 row_mask:0xf bank_mask:0xf")
    for j in range(3):
        for e in range(4):
            a = V_ACC + 8*j + e
            A(f"v_permlane32_swap_b32 v{a}, v{a+4}")
    A(f"v_mov_b32 v{V_T}, v{V_L}")
    for j in range(3):
        for e in range(4):
            a = V_ACC + 8*j + e
            A(f"v_add_f32 v{a}, v{a}, v{a+4}")
    A(f"v_permlane32_swap_b32 v{V_L}, v{V_T}")
    for j in range(3):
        for e in range(2):
            a = V_ACC + 8*j + e
            A(f"v_permlane16_swap_b32 v{a}, v{a+2}")
    A(f"v_add_f32 v{V_L}, v{V_L}, v{V_T}")
    for j in range(3):
        for e in range(2):
            a = V_ACC + 8*j + e
            A(f"v_add_f32 v{a}, v{a}, v{a+2}")
    A(f"v_mov_b32 v{V_T}, v{V_L}")
    C("LDS address: OW + w*768 + 4*(8*(l&7) + 4*bit5 + 2*bit4 + bit3)")
    A(f"v_and_b32 v{V_U}, 7, v{V_LANE}")
    A(f"v_lshrrev_b32 v{V_A2}, 3, v{V_LANE}")
    A(f"v_permlane16_swap_b32 v{V_L}, v{V_T}")
    for j in range(3):
        a = V_ACC + 8*j
        A(f"v_add_f32_dpp v{a+2}, v{a}, v{a} row_ror:8 row_mask:0xf bank_mask:0x3")
        A(f"v_add_f32_dpp v{a+2}, v{a+1}, v{a+1} row_ror:8 row_mask:0xf bank_mask:0xc")
    A(f"v_lshl_add_u32 v{V_A2}, v{V_U}, 3, v{V_A2}")
    A(f"s_mul_i32 s66, s{S_W}, 768")
    A(f"v_lshl_add_u32 v{V_A2}, v{V_A2}, 2, s66")
    A(f"v_add_f32 v{V_L}, v{V_L}, v{V_T}")
    A(f"s_lshl_b32 s66, s{S_W}, 2")
    A(f"v_mov_b32 v{V_A3}, s66")
    for j in range(3):
        A(f"ds_write_b32 v{V_A2}, v{V_ACC+8*j+2} offset:{L_OW+256*j}")
    A(f"ds_write2_b32 v{V_A3}, v{V_M}, v{V_L} offset0:0 offset1:4" if False else f"ds_write_b32 v{V_A3}, v{V_M} offset:{L_ML}")
    A(f"ds_write_b32 v{V_A3}, v{V_L} offset:{L_ML+16}")
    C("tag helpers")
    A(f"s_mov_b32 s{S_SEL0}, 0x07060500")
    A(f"s_mov_b32 s{S_SEL0+1}, 0x07060501")
    A(f"s_mov_b32 s{S_SEL0+2}, 0x07060502")
    A(f"s_mov_b32 s{S_SEL0+3}, 0x07060503")
    A(f"s_mov_b32 s{S_SELA}, 0x0c0c0400")
    A(f"s_mov_b32 s{S_SELB}, 0x04000c0c")
    A(f"s_mov_b32 s{S_MSK}, 0xffffff00")
    A(f"s_mov_b32 s{S_SPIN}, {cfg['spin']}")
    A("s_waitcnt lgkmcnt(0)")
    A("s_barrier")
    def tag4(r):
        for k in range(4):
            A(f"v_perm_b32 v{r+k}, v{r+k}, v{V_TAG}, s{S_SEL0+k}")
    def chk4(r, first, t0, t1):
        A(f"v_perm_b32 v{t0}, v{r+1}, v{r}, s{S_SELA}")
        A(f"v_perm_b32 v{t1}, v{r+3}, v{r+2}, s{S_SELB}")
        if first:
            A(f"v_or_b32 v{t0}, v{t0}, v{t1}")
            A(f"v_xor_b32 v{V_S0}, v{t0}, v{V_TAG}")
        else:
            A(f"v_or_b32 v{t0}, v{t0}, v{t1}")
            A(f"v_bitop3_b32 v{V_S0}, v{t0}, v{V_TAG}, v{V_S0} bitop3:0xbe")
    def strip4(r):
        for k in range(4):
            A(f"v_and_b32 v{r+k}, s{S_MSK}, v{r+k}")
    A(f"s_cmp_lg_u32 s{S_W}, 3")
    A("s_cbranch_scc1 L_nopub")
    C("---- wave 3: combine the four waves and publish the record ----")
    R = V_X0
    A(f"v_min_u32 v{V_T}, 47, v{V_LANE}")
    A(f"v_lshlrev_b32 v{V_A2}, 4, v{V_T}")
    A(f"v_mov_b32 v{V_A3}, 0")
    A(f"ds_read_b128 v[{R+16}:{R+19}], v{V_A3} offset:{L_ML}")
    A(f"ds_read_b128 v[{R+20}:{R+23}], v{V_A3} offset:{L_ML+16}")
    for w in range(4):
        A(f"ds_read_b128 v[{R+4*w}:{R+4*w+3}], v{V_A2} offset:{L_OW+768*w}")
    A(f"v_lshlrev_b32 v{V_PA}, 4, v{V_LANE}")
    A(f"s_lshl_b32 s70, s2, 10")
    A(f"s_add_u32 s70, s70, {WS_OX}")
    A(f"v_cmp_lt_u32 vcc, 47, v{V_LANE}")
    A("s_waitcnt lgkmcnt(5)")
    A(f"v_max3_f32 v{V_M}, v{R+16}, v{R+17}, v{R+18}")
    A(f"v_max_f32 v{V_M}, v{V_M}, v{R+19}")
    for w in range(4):
        A(f"v_sub_f32 v{R+16+w}, v{R+16+w}, v{V_M}")
    for w in range(4):
        A(f"v_mul_f32 v{R+16+w}, {f32(1.4426950408889634)}, v{R+16+w}")
    for w in range(4):
        A(f"v_exp_f32 v{R+16+w}, v{R+16+w}")
    A("s_waitcnt lgkmcnt(0)")
    A(f"v_mul_f32 v{V_L}, v{R+16}, v{R+20}")
    for k in range(4):
        A(f"v_mul_f32 v{R+k}, v{R+16}, v{R+k}")
    for w in range(1, 4):
        A(f"v_fmac_f32 v{V_L}, v{R+16+w}, v{R+20+w}")
        for k in range(4):
            A(f"v_fmac_f32 v{R+k}, v{R+16+w}, v{R+4*w+k}")
    A(f"v_cndmask_b32 v{R}, v{R}, v{V_M}, vcc")
    A(f"v_cndmask_b32 v{R+1}, v{R+1}, v{V_L}, vcc")
    tag4(R)
    A("s_mov_b32 exec_hi, 0x0001ffff")
    A(f"buffer_store_dwordx4 v[{R}:{R+3}], v{V_PA}, s[{S_WS}:{S_WS+3}], s70 offen sc1")
    A("s_mov_b32 exec_hi, -1")
    g.stamp("record published")
    if cfg["stamps"]:
        A("s_branch L_nopub2")
    L("L_nopub")
    if cfg["stamps"]:
        g.nst -= 1
        g.stamp("record published")
        L("L_nopub2")
    A("s_cmp_ge_u32 s2, 200")
    A("s_cbranch_scc1 L_stage3")
    C("---- stage 2 ----")
    R = V_X1
    A("s_cmp_ge_u32 s2, 160")
    A("s_cbranch_scc1 L_ffn")
    C("wo tile: wave w gathers the two records of (batch w, head rb)")
    A(f"v_min_u32 v{V_T}, 47, v{V_LANE}")
    A(f"v_lshlrev_b32 v{V_PA}, 4, v{V_T}")
    A(f"v_mov_b32 v{V_A3}, 768")
    A(f"s_lshl_b32 s70, s{S_W}, 5")
    A(f"s_add_u32 s70, s70, s{S_RB}")
    A(f"s_lshl_b32 s70, s70, 11")
    A(f"s_add_u32 s70, s70, {WS_OX}")
    A(f"s_mul_i32 s66, s{S_W}, {OBP}")
    A(f"v_lshl_add_u32 v{V_A2}, v{V_T}, 3, s66")
    L("L_opoll")
    A(f"buffer_load_dwordx4 v[{R}:{R+3}], v{V_PA}, s[{S_WS}:{S_WS+3}], s70 offen sc1")
    A(f"buffer_load_dwordx4 v[{R+4}:{R+7}], v{V_PA}, s[{S_WS}:{S_WS+3}], s70 offen offset:1024 sc1")
    A(f"buffer_load_dwordx4 v[{R+8}:{R+11}], v{V_A3}, s[{S_WS}:{S_WS+3}], s70 offen sc1")
    A(f"buffer_load_dwordx4 v[{R+12}:{R+15}], v{V_A3}, s[{S_WS}:{S_WS+3}], s70 offen offset:1024 sc1")
    A(f"s_sub_u32 s{S_SPIN}, s{S_SPIN}, 1")
    A("s_cbranch_scc1 L_end")
    A("s_waitcnt vmcnt(0)")
    for k in range(4):
        chk4(R+4*k, k == 0, V_T, V_U)
    A(f"v_cmp_ne_u32 vcc, 0, v{V_S0}")
    A("s_nop 1")
    A("s_cbranch_vccnz L_opoll")
    g.stamp("records gathered")
    M0_, L0_, M1_, L1_ = R+8, R+9, R+12, R+13
    for r in (M0_, M1_, L0_, L1_):
        A(f"v_and_b32 v{r}, s{S_MSK}, v{r}")
    A(f"v_max_f32 v{V_M}, v{M0_}, v{M1_}")
    A(f"v_sub_f32 v{M0_}, v{M0_}, v{V_M}")
    A(f"v_sub_f32 v{M1_}, v{M1_}, v{V_M}")
    A(f"v_mul_f32 v{M0_}, {f32(1.4426950408889634)}, v{M0_}")
    A(f"v_mul_f32 v{M1_}, {f32(1.4426950408889634)}, v{M1_}")
    A(f"v_exp_f32 v{M0_}, v{M0_}")
    A(f"v_exp_f32 v{M1_}, v{M1_}")
    strip4(R); strip4(R+4)
    A(f"v_mul_f32 v{V_L}, v{M0_}, v{L0_}")
    A(f"v_fmac_f32 v{V_L}, v{M1_}, v{L1_}")
    A(f"v_rcp_f32 v{V_L}, v{V_L}")
    for k in range(4):
        A(f"v_mul_f32 v{R+k}, v{M0_}, v{R+k}")
    for k in range(4):
        A(f"v_fmac_f32 v{R+k}, v{M1_}, v{R+4+k}")
    for k in range(4):
        A(f"v_mul_f32 v{R+k}, v{V_L}, v{R+k}")
    A(f"v_cvt_pk_bf16_f32 v{R}, v{R}, v{R+1}")
    A(f"v_cvt_pk_bf16_f32 v{R+1}, v{R+2}, v{R+3}")
    A(f"ds_write_b64 v{V_A2}, v[{R}:{R+1}] offset:{L_OB}")
    A("s_branch L_proj2")
    L("L_ffn")
    C("w2 tile: wave w gathers h partials of batch w: load j covers col-block j; lane = kh*8 + chunk + 16*wq")
    A(f"v_bfe_u32 v{V_T}, v{V_LANE}, 3, 1")
    A(f"v_lshrrev_b32 v{V_U}, 4, v{V_LANE}")
    A(f"v_and_b32 v{V_S1}, 7, v{V_LANE}")
    A(f"v_lshlrev_b32 v{V_PA}, 11, v{V_T}")
    A(f"v_lshl_add_u32 v{V_PA}, v{V_U}, 7, v{V_PA}")
    A(f"v_lshl_add_u32 v{V_PA}, v{V_S1}, 4, v{V_PA}")
    A(f"s_mul_i32 s70, s{S_RB}, {6*2048}")
    A(f"s_lshl_b32 s66, s{S_W}, 9")
    A(f"s_add_u32 s70, s70, s66")
    A(f"s_add_u32 s70, s70, {WS_QX}")
    A(f"s_add_u32 s71, s70, 4096")
    A(f"s_add_u32 s72, s70, 8192")
    A(f"v_lshlrev_b32 v{V_A2}, 5, v{V_U}")
    A(f"v_lshl_add_u32 v{V_A2}, v{V_S1}, 2, v{V_A2}")
    A(f"s_mul_i32 s66, s{S_W}, {OBP}")
    A(f"v_add_u32 v{V_A2}, s66, v{V_A2}")
    L("L_hpoll")
    for j in range(3):
        A(f"buffer_load_dwordx4 v[{R+4*j}:{R+4*j+3}], v{V_PA}, s[{S_WS}:{S_WS+3}], s{70+j} offen sc1")
    A(f"s_sub_u32 s{S_SPIN}, s{S_SPIN}, 1")
    A("s_cbranch_scc1 L_end")
    A("s_waitcnt vmcnt(0)")
    A(f"v_xor_b32 v{V_S0}, v{R+1}, v{V_TAG}")
    for k in range(1, 6):
        A(f"v_bitop3_b32 v{V_S0}, v{R+2*k+1}, v{V_TAG}, v{V_S0} bitop3:0xbe")
    A(f"v_cmp_ne_u32 vcc, 0, v{V_S0}")
    A("s_nop 1")
    A("s_cbranch_vccnz L_hpoll")
    if cfg["stamps"]:
        g.nst -= 1
        g.stamp("records gathered")
    for k in range(6):
        A(f"v_add_f32_dpp v{R+2*k}, v{R+2*k}, v{R+2*k} row_ror:8 row_mask:0xf bank_mask:0xf")
    for k in range(6):
        A(f"v_max_f32 v{R+2*k}, 0, v{R+2*k}")
    for j in range(3):
        A(f"v_cvt_pk_bf16_f32 v{R+4*j}, v{R+4*j}, v{R+4*j+2}")
    for j in range(3):
        A(f"ds_write_b32 v{V_A2}, v{R+4*j} offset:{L_OB+128*j}")
    L("L_proj2")
    C("tr-read addresses for the phase-2 tile; operand address; publish address")
    A(f"v_lshrrev_b32 v{V_T}, 4, v{V_LANE}")
    A(f"v_bfe_u32 v{V_U}, v{V_LANE}, 2, 2")
    A(f"v_lshl_add_u32 v{V_S0}, v{V_T}, 2, v{V_U}")
    A(f"v_and_b32 v{V_S1}, 7, v{V_S0}")
    A(f"s_lshl_b32 s66, s{S_W}, 1")
    A(f"v_xor_b32 v{V_S1}, s66, v{V_S1}")
    A(f"v_lshlrev_b32 v{V_S1}, 5, v{V_S1}")
    A(f"v_lshl_add_u32 v{V_S1}, v{V_S0}, 8, v{V_S1}")
    A(f"v_and_b32 v{V_U}, 3, v{V_LANE}")
    A(f"v_lshl_add_u32 v{V_T2E}, v{V_U}, 3, v{V_S1}")
    A(f"v_xor_b32 v{V_T2O}, 32, v{V_T2E}")
    A(f"v_mul_u32_u24 v{V_A3}, {OBP}, v{V_U}")
    A(f"v_lshl_add_u32 v{V_A3}, v{V_T}, 3, v{V_A3}")
    A(f"v_add_u32 v{V_A3}, {L_OB}, v{V_A3}")
    A(f"v_lshlrev_b32 v{V_PA}, 9, v{V_U}")
    A(f"v_lshl_add_u32 v{V_PA}, v{V_T}, 4, v{V_PA}")
    A(f"v_and_b32 v{V_S0}, 4, v{V_LANE}")
    A(f"v_lshl_add_u32 v{V_PA}, v{V_S0}, 4, v{V_PA}")
    A(f"v_cmp_ne_u32 vcc, 0, v{V_S0}")
    A(f"s_lshl_b32 s70, s2, 11")
    A(f"s_lshl_b32 s71, s{S_W}, 7")
    A(f"s_add_u32 s70, s70, s71")
    A(f"s_add_u32 s70, s70, {WS_YX}")
    A("s_waitcnt vmcnt(0) lgkmcnt(0)")
    A("s_barrier")
    WA = V_U0; OBR = V_X0; D0 = V_X0 + 24; D1 = V_X0 + 28
    for s in range(6):
        A(f"ds_read2_b64 v[{OBR+4*s}:{OBR+4*s+3}], v{V_A3} offset0:{8*s} offset1:{8*s+4}")
        for nt, va in ((0, V_T2E), (1, V_T2O)):
            r = WA + 8*s + 4*nt
            A(f"ds_read_b64_tr_b16 v[{r}:{r+1}], v{va} offset:{L_T+8192*s}")
            A(f"ds_read_b64_tr_b16 v[{r+2}:{r+3}], v{va} offset:{L_T+8192*s+4096}")
        if s >= 2:
            m = s - 2
            A("s_waitcnt lgkmcnt(10)")
            for nt, d in ((0, D0), (1, D1)):
                r = WA + 8*m + 4*nt
                A(f"v_mfma_f32_16x16x32_bf16 v[{d}:{d+3}], v[{r}:{r+3}], v[{OBR+4*m}:{OBR+4*m+3}], " + ("0" if m == 0 else f"v[{d}:{d+3}]"))
    for m in (4, 5):
        A(f"s_waitcnt lgkmcnt({5*(5-m)})")
        for nt, d in ((0, D0), (1, D1)):
            r = WA + 8*m + 4*nt
            A(f"v_mfma_f32_16x16x32_bf16 v[{d}:{d+3}], v[{r}:{r+3}], v[{OBR+4*m}:{OBR+4*m+3}], v[{d}:{d+3}]")
    A("s_mov_b32 exec_lo, 0x00ff00ff")
    A("s_mov_b32 exec_hi, 0x00ff00ff")
    A("s_nop 6")
    for k in range(4):
        A(f"v_cndmask_b32 v{D0+k}, v{D0+k}, v{D1+k}, vcc")
    tag4(D0)
    A(f"buffer_store_dwordx4 v[{D0}:{D0+3}], v{V_PA}, s[{S_WS}:{S_WS+3}], s70 offen sc1")
    A("s_mov_b64 exec, -1")
    g.stamp("stage2 published")
    A("s_branch L_fin")
    L("L_stage3")
    C("---- stage 3: WGs 216..255, waves 0,1: consumer c = (wg-216)*2 + w ----")
    A("s_cmp_lt_u32 s2, 216")
    A("s_cbranch_scc1 L_fin")
    A(f"s_cmp_ge_u32 s{S_W}, 2")
    A("s_cbranch_scc1 L_fin")
    A("s_sub_u32 s66, s2, 216")
    A("s_lshl_b32 s66, s66, 1")
    A(f"s_add_u32 s66, s66, s{S_W}")
    A("s_mul_i32 s67, s66, 3277")
    A("s_lshr_b32 s67, s67, 16")
    A("s_mul_i32 s68, s67, 20")
    A("s_sub_u32 s68, s66, s68")
    A("s_lshr_b32 s69, s68, 2")
    A("s_and_b32 s70, s68, 3")
    A("s_lshl_b32 s69, s69, 11")
    A("s_lshl_b32 s70, s70, 7")
    A("s_add_u32 s70, s70, s69")
    A("s_lshl_b32 s69, s67, 9")
    A("s_add_u32 s70, s70, s69")
    A(f"s_add_u32 s70, s70, {WS_YX}")
    for t in range(1, 5):
        A(f"s_add_u32 s{70+t}, s70, {t*8*5*2048}")
    A(f"v_lshrrev_b32 v{V_T}, 3, v{V_LANE}")
    A(f"v_and_b32 v{V_U}, 7, v{V_LANE}")
    A(f"v_mul_u32_u24 v{V_PA}, {5*2048}, v{V_T}")
    A(f"v_lshl_add_u32 v{V_PA}, v{V_U}, 4, v{V_PA}")
    C("output column of this lane: 32*cg + 4*(l&7) + 2*bit4 + bit5 ... byte offset in x/out")
    A(f"v_bfe_u32 v{V_S0}, v{V_LANE}, 4, 1")
    A(f"v_bfe_u32 v{V_S1}, v{V_LANE}, 5, 1")
    A(f"v_lshl_add_u32 v{V_S0}, v{V_S0}, 1, v{V_S1}")
    A(f"v_lshl_add_u32 v{V_S0}, v{V_U}, 2, v{V_S0}")
    A(f"v_lshlrev_b32 v{V_A2}, 1, v{V_S0}")
    A("s_mul_i32 s67, s67, 1280")
    A("s_lshl_b32 s68, s68, 6")
    A("s_add_u32 s75, s67, s68")
    A(f"buffer_load_ushort v{V_A3}, v{V_A2}, s[{S_X}:{S_X+3}], s75 offen")
    A(f"s_mov_b32 s{S_OUT}, s20")
    A(f"s_mov_b32 s{S_OUT+1}, s21")
    A(f"s_mov_b32 s{S_OUT+2}, 5120")
    A(f"s_mov_b32 s{S_OUT+3}, 0x00020000")
    R = V_X1
    L("L_ypoll")
    for t in range(5):
        A(f"buffer_load_dwordx4 v[{R+4*t}:{R+4*t+3}], v{V_PA}, s[{S_WS}:{S_WS+3}], s{70+t} offen sc1")
    A(f"s_sub_u32 s{S_SPIN}, s{S_SPIN}, 1")
    A("s_cbranch_scc1 L_end")
    for t in range(5):
        A(f"s_waitcnt vmcnt({4-t})")
        chk4(R+4*t, t == 0, V_T, V_U)
    A(f"v_cmp_ne_u32 vcc, 0, v{V_S0}")
    A("s_nop 1")
    A("s_cbranch_vccnz L_ypoll")
    if cfg["stamps"]:
        g.nst -= 2
        g.stamp("records gathered")
    for t in range(5): strip4(R+4*t)
    for k in range(4):
        A(f"v_add_f32 v{R+k}, v{R+k}, v{R+4+k}")
        A(f"v_add_f32 v{R+8+k}, v{R+8+k}, v{R+12+k}")
    for k in range(4):
        A(f"v_add_f32 v{R+k}, v{R+k}, v{R+8+k}")
    Z = R+16
    A(f"v_permlane32_swap_b32 v{Z}, v{Z+1}")
    A(f"v_permlane32_swap_b32 v{Z+2}, v{Z+3}")
    A(f"v_permlane32_swap_b32 v{R}, v{R+1}")
    A(f"v_permlane32_swap_b32 v{R+2}, v{R+3}")
    A(f"v_add_f32 v{Z}, v{Z}, v{Z+1}")
    A(f"v_add_f32 v{Z+2}, v{Z+2}, v{Z+3}")
    A(f"v_add_f32 v{R}, v{R}, v{R+1}")
    A(f"v_add_f32 v{R+2}, v{R+2}, v{R+3}")
    A(f"v_permlane16_swap_b32 v{Z}, v{Z+2}")
    A("s_nop 0")
    A(f"v_permlane16_swap_b32 v{R}, v{R+2}")
    A(f"v_add_f32 v{Z}, v{Z}, v{Z+2}")
    A("s_nop 0")
    A(f"v_add_f32 v{R}, v{R}, v{R+2}")
    A(f"v_add_f32_dpp v{Z}, v{Z}, v{Z} row_ror:8 row_mask:0xf bank_mask:0xf")
    A("s_nop 0")
    A(f"v_add_f32_dpp v{R}, v{R}, v{R} row_ror:8 row_mask:0xf bank_mask:0xf")
    A(f"v_lshlrev_b32 v{V_A3}, 16, v{V_A3}")
    A(f"v_cvt_pk_bf16_f32 v{V_T}, v{R}, v{Z}")
    A(f"v_and_b32 v{Z}, 0xffff0000, v{V_T}")
    A(f"v_lshlrev_b32 v{R}, 16, v{V_T}")
    A(f"v_mul_f32 v{V_U}, {f32(-1.4426950408889634)}, v{Z}")
    A(f"v_exp_f32 v{V_U}, v{V_U}")
    A("s_nop 0")
    A(f"v_add_f32 v{V_U}, 1.0, v{V_U}")
    A(f"v_rcp_f32 v{V_U}, v{V_U}")
    A("s_nop 0")
    A(f"v_mul_f32 v{Z}, v{Z}, v{V_U}")
    A(f"v_cvt_pk_bf16_f32 v{V_T}, v{Z}, v{Z}")
    A(f"v_and_b32 v{Z}, 0xffff0000, v{V_T}")
    A(f"v_mul_f32 v{R}, v{R}, v{Z}")
    A(f"v_cvt_pk_bf16_f32 v{V_T}, v{R}, v{R}")
    A(f"v_and_b32 v{R}, 0xffff0000, v{V_T}")
    A(f"v_add_f32 v{R}, v{V_A3}, v{R}")
    A(f"v_cvt_pk_bf16_f32 v{V_T}, v{R}, v{R}")
    A("s_mov_b32 exec_lo, 0x00ff00ff")
    A("s_mov_b32 exec_hi, 0x00ff00ff")
    A(f"buffer_store_short v{V_T}, v{V_A2}, s[{S_OUT}:{S_OUT+3}], s75 offen")
    A("s_cmp_lg_u32 s66, 0")
    A("s_cbranch_scc1 L_noe")
    C("every workgroup has read the epoch word by now: advance it for the next launch")
    A("s_mov_b64 exec, 1")
    A(f"v_mov_b32 v{V_U}, {WS_E}")
    A(f"buffer_store_dword v{V_TAG}, v{V_U}, s[{S_WS}:{S_WS+3}], 0 offen")
    L("L_noe")
    A("s_mov_b64 exec, -1")
    g.stamp("out stored")
    L("L_fin")
    if cfg["stamps"]:
        A("s_waitcnt vmcnt(0)")
        A("s_memrealtime s[96:97]")
        A("s_getreg_b32 s66, hwreg(HW_REG_XCC_ID)")
        A("s_waitcnt lgkmcnt(0)")
        A(f"v_writelane_b32 v{V_ST}, s96, 61")
        A(f"v_writelane_b32 v{V_ST}, s98, 62")
        A(f"v_writelane_b32 v{V_ST}, s66, 63")
        A(f"s_sub_u32 s66, {cfg['spin']}, s{S_SPIN}")
        A(f"v_writelane_b32 v{V_ST}, s66, 60")
        A("s_lshl_b32 s66, s2, 10")
        A(f"s_add_u32 s66, s66, {WS_DBG}")
        A(f"v_lshlrev_b32 v{V_T}, 2, v0")
        A(f"buffer_store_dword v{V_ST}, v{V_T}, s[{S_WS}:{S_WS+3}], s66 offen")
    L("L_end")
    A("s_endpgm")
    for tag in g.rare:
        L(f"L_rare_{tag}")
        A(f"v_max_f32_dpp v{V_T}, v{V_T}, v{V_T} row_ror:8 row_mask:0xf bank_mask:0xf")
        for sw in ("v_permlane16_swap_b32", "v_permlane32_swap_b32"):
            A(f"v_mov_b32 v{V_U}, v{V_T}")
            A("s_nop 1")
            A(f"{sw} v{V_T}, v{V_U}")
            A("s_nop 1")
            A(f"v_max_f32 v{V_T}, v{V_T}, v{V_U}")
        A(f"v_sub_f32 v{V_U}, v{V_M}, v{V_T}")
        A(f"v_mul_f32 v{V_U}, {f32(1.4426950408889634)}, v{V_U}")
        A(f"v_exp_f32 v{V_U}, v{V_U}")
        A(f"v_mov_b32 v{V_M}, v{V_T}")
        A(f"v_mul_f32 v{V_L}, v{V_U}, v{V_L}")
        for k in range(24):
            A(f"v_mul_f32 v{V_ACC+k}, v{V_U}, v{V_ACC+k}")
        A(f"s_branch L_back_{tag}")
    o.append('.section .rodata,"a"')
    o.append(".p2align 6")
    o.append(f".amdhsa_kernel {name}")
    o.append(f"  .amdhsa_next_free_vgpr {V_END}")
    o.append("  .amdhsa_next_free_sgpr 102")
    o.append(f"  .amdhsa_accum_offset {V_END}")
    o.append("  .amdhsa_group_segment_fixed_size 0")
    o.append("  .amdhsa_kernarg_size 88")
    o.append("  .amdhsa_user_sgpr_count 2")
    o.append("  .amdhsa_user_sgpr_kernarg_segment_ptr 1")
    o.append("  .amdhsa_system_sgpr_workgroup_id_x 1")
    o.append("  .amdhsa_float_denorm_mode_32 3")
    o.append(".end_amdhsa_kernel")
    return "\n".join(o) + "\n"

if __name__ == "__main__":
    out = sys.argv[1]
    kw = json.loads(sys.argv[2]) if len(sys.argv) > 2 else {}
    open(out, "w").write(build(**kw))
```

```python
import sys, json, struct

KNAME = "recurrent_scan__mha_block_cached__dense_activation_relu__decode_kernel"
LOG2E = 1.4426950408889634

def f32(x):
    return "0x%08x" % struct.unpack("<I", struct.pack("<f", x))[0]

NBKV = 4*32*4096*384
WS_E   = 0
WS_CT  = 0x1000
WS_ML  = 0x4000
WS_QX  = 0x10000
WS_OX  = 0x88000
WS_YX  = 0x118000
WS_SC  = 0x17c000
WS_END = 0x1fc000
WS_DBG = 0x200000
L_T   = 0
L_XN  = 49152
XNP   = 1344
L_QB  = L_XN + 4*XNP
L_OB  = L_QB + 3*384
OBP   = 448
L_SC  = L_OB + 4*OBP
L_OW  = L_SC + 8192
L_END = L_OW + 3*3072

V_KOFF=1; V_T2E=2; V_T2O=3; V_LANE=4; V_M=5; V_L=6; V_S0=7; V_S1=8; V_T=9; V_U=10
V_P0L=11; V_P0H=12; V_P1L=13; V_P1H=14; V_ST=15
V_PA=16; V_TAG=17; V_A2=18; V_A3=19
V_PD=20
V_MLD=32
V_SCD=36
V_SCW=38; V_SCR=39; V_MLA=40; V_OWA=41; V_QA=42; V_SCG=43
V_Q=44
V_ACC=56
V_A=80; V_B=104
V_X=128
S_W=3
S_CUR=28; S_T1=36; S_T2=40; S_X=44; S_WS=48; S_OUT=52; S_P1=56
S_UOFF=60; S_CNT=61; S_TAG=62; S_E=63; S_PITCH=64
S_SOFF=76; S_SPIN=77; S_N=78; S_NC=79
S_SEL0=80; S_SELA=84; S_SELB=85; S_MSK=86; S_RB=87
S_D0=88; S_D1=89; S_D2=90; S_B1=91; S_B2=92; S_EVT=93; S_EID=94; S_PCUR=95
S_RET=26
S_CTP=32
S_CLM=34; S_G=35
S_MG=100; S_PF=101
S_SCO=14
S_LIM=15

class Gen:
    def __init__(self, **kw):
        self.o = []
        self.cfg = dict(stamps=False, lds=81920+1024, kname=KNAME, pol="nt", spin=1<<20, NX=4, D=24,
                        corder="rr", headlim=6, outpol="")
        self.cfg.update(kw)
        self.names = {}
    def A(self, s): self.o.append("  " + s)
    def L(self, s): self.o.append(s + ":")
    def C(self, s): self.o.append("  ; " + s)
    def stamp(self, name):
        if not self.cfg["stamps"]: return
        k = self.names.setdefault(name, len(self.names))
        self.A(f"s_memrealtime s[96:97]")
        self.A("s_waitcnt lgkmcnt(0)")
        self.A(f"v_writelane_b32 v{V_ST}, s96, {k}")

def build(**kw):
    g = Gen(**kw); A = g.A; L = g.L; C = g.C; cfg = g.cfg
    pol = cfg["pol"]; name = cfg["kname"]; o = g.o
    NX = cfg["NX"]; D = cfg["D"]; HL = cfg["headlim"]
    assert NX % 2 == 0 and D % 8 == 0 and D <= 32
    V_END = V_X + max(24*NX, 96)
    TS = (128 - D)//4
    o.append(f"; @launch grid=(256,1,1) block=(256,1,1) lds={cfg['lds']}")
    o.append('.amdgcn_target "amdgcn-amd-amdhsa--gfx950"')
    o.append(".text")
    o.append(f".globl {name}")
    o.append(".p2align 8")
    o.append(f".type {name},@function")
    o.append(f"{name}:")
    A("s_cmp_ge_u32 s2, 256")
    A("s_cbranch_scc1 L_end")
    A("s_load_dwordx16 s[4:19], s[0:1], 0")
    A("s_load_dwordx4 s[20:23], s[0:1], 64")
    A("s_load_dwordx2 s[24:25], s[0:1], 80")
    if cfg["stamps"] or cfg.get("diag_total"):
        A("s_memrealtime s[98:99]")
        A(f"v_mov_b32 v{V_ST}, 0")
    A(f"v_lshrrev_b32 v{V_T}, 6, v0")
    A(f"v_and_b32 v{V_LANE}, 63, v0")
    A(f"v_readfirstlane_b32 s{S_W}, v{V_T}")
    C("phase-1 tile role: cb = wg>>1, kh = wg&1")
    A(f"s_lshr_b32 s65, s2, 1")
    A(f"s_and_b32 s66, s2, 1")
    A(f"s_cmp_lt_u32 s65, 96")
    A(f"s_movk_i32 s{S_PITCH}, 3072")
    A(f"s_cselect_b32 s{S_PITCH}, 12288, s{S_PITCH}")
    A(f"s_cselect_b32 s67, 0, 96")
    A(f"s_sub_u32 s67, s65, s67")
    A(f"s_lshl_b32 s67, s67, 7")
    A(f"s_mul_i32 s68, s66, 320")
    A(f"s_mul_i32 s68, s68, s{S_PITCH}")
    A(f"s_add_u32 s67, s67, s68")
    A(f"s_mul_i32 s69, s{S_PITCH}, 319")
    A(f"s_add_u32 s69, s69, 128")
    A(f"v_lshrrev_b32 v{V_T}, 3, v{V_LANE}")
    A(f"v_and_b32 v{V_U}, 7, v{V_LANE}")
    A(f"v_and_b32 v{V_S0}, 6, v{V_T}")
    A(f"v_xor_b32 v{V_S0}, v{V_S0}, v{V_U}")
    A(f"v_mul_lo_u32 v{V_PA}, s{S_PITCH}, v{V_T}")
    A(f"v_lshl_add_u32 v{V_PA}, v{V_S0}, 4, v{V_PA}")
    A(f"v_lshlrev_b32 v{V_A2}, 4, v{V_LANE}")
    A(f"v_lshlrev_b32 v{V_A3}, 2, v{V_LANE}")
    A(f"s_mul_i32 s70, s{S_W}, 1280")
    A(f"s_mul_i32 s{S_SOFF}, s{S_W}, 80")
    A(f"s_mul_i32 s{S_SOFF}, s{S_SOFF}, s{S_PITCH}")
    A(f"s_mul_i32 s72, s{S_W}, 10240")
    A(f"s_lshl_b32 s73, s{S_PITCH}, 3")
    A(f"s_mov_b32 s{S_X+2}, 5120")
    A(f"s_mov_b32 s{S_X+3}, 0x00020000")
    A(f"s_mov_b32 s{S_T1+3}, 0x00020000")
    A(f"s_cmp_lt_u32 s2, 240")
    A(f"s_cselect_b32 s{S_T1+2}, s69, 0")
    A(f"s_cselect_b32 s{S_P1+2}, {WS_END}, 0")
    A(f"s_cmp_lt_u32 s65, 96")
    A("s_waitcnt lgkmcnt(0)")
    A(f"s_cselect_b32 s{S_T1}, s10, s16")
    A(f"s_cselect_b32 s{S_T1+1}, s11, s17")
    A(f"s_mov_b32 s{S_X}, s4")
    A(f"s_mov_b32 s{S_X+1}, s5")
    XR = V_X + 48
    A(f"buffer_load_dwordx4 v[{XR}:{XR+3}], v{V_A2}, s[{S_X}:{S_X+3}], s70 offen")
    A(f"buffer_load_dword v{XR+4}, v{V_A3}, s[{S_X}:{S_X+3}], s70 offen offset:1024")
    A(f"s_add_u32 s{S_T1}, s{S_T1}, s67")
    A(f"s_addc_u32 s{S_T1+1}, s{S_T1+1}, 0")
    A(f"s_mov_b32 m0, s72")
    A(f"s_load_dword s{S_E}, s[24:25], {WS_E}")
    for t in range(10):
        A(f"buffer_load_dwordx4 v{V_PA}, s[{S_T1}:{S_T1+3}], s{S_SOFF} offen {pol} lds")
        if t < 9:
            A(f"s_add_u32 m0, m0, 1024")
            A(f"s_add_u32 s{S_SOFF}, s{S_SOFF}, s73")
    C("attention pieces p_j = 256*j + wg cover units [U(p), U(p+1)), U(p) = (128p+1)/3")
    A(f"v_mul_u32_u24 v{V_KOFF}, 384, v{V_T}")
    A(f"v_lshl_add_u32 v{V_KOFF}, v{V_U}, 4, v{V_KOFF}")
    def ufun(dst, padd):
        A(f"s_lshl_b32 s{dst}, s2, 7")
        A(f"s_add_u32 s{dst}, s{dst}, {128*padd + 1}")
        A(f"s_mul_hi_u32 s{dst}, s{dst}, 0xaaaaaaab")
        A(f"s_lshr_b32 s{dst}, s{dst}, 1")
    ufun(S_D0, 0); ufun(S_B1, 1); ufun(S_D1, 256); ufun(S_B2, 257); ufun(S_D2, 512)
    A(f"s_sub_u32 s{S_B1}, s{S_B1}, s{S_D0}")
    A(f"s_sub_u32 s{S_B2}, s{S_B2}, s{S_D1}")
    A(f"s_add_u32 s{S_B2}, s{S_B2}, s{S_B1}")
    A(f"s_sub_u32 s{S_D1}, s{S_D1}, s{S_B1}")
    A(f"s_sub_u32 s{S_D2}, s{S_D2}, s{S_B2}")
    A(f"s_mov_b32 s{S_CUR}, s6")
    A(f"s_mov_b32 s{S_CUR+1}, s7")
    A(f"s_mov_b32 s{S_CUR+2}, {NBKV}")
    A(f"s_mov_b32 s{S_CUR+3}, 0x00020000")
    A(f"s_mov_b32 s{S_N}, s{S_W}")
    A(f"s_add_u32 s{S_UOFF}, s{S_N}, s{S_D0}")
    A(f"s_mul_i32 s{S_UOFF}, s{S_UOFF}, 6144")
    A(f"s_mov_b32 s{S_WS}, s24")
    A(f"s_mov_b32 s{S_WS+1}, s25")
    A(f"s_mov_b32 s{S_WS+2}, {WS_END if not cfg['stamps'] else WS_DBG + 256*1024}")
    A(f"s_mov_b32 s{S_WS+3}, 0x00020000")
    A(f"s_mov_b32 s{S_P1}, s24")
    A(f"s_mov_b32 s{S_P1+1}, s25")
    A(f"s_mov_b32 s{S_P1+3}, 0x00020000")
    def ld(base, k):
        r = base + 4*k
        A(f"buffer_load_dwordx4 v[{r}:{r+3}], v{V_KOFF}, s[{S_CUR}:{S_CUR+3}], s{S_UOFF} offen offset:{3072*(k//3)+128*(k%3)} {pol}")
    def step_simple():
        A(f"s_add_u32 s{S_N}, s{S_N}, 4")
        A(f"s_add_u32 s{S_UOFF}, s{S_UOFF}, {4*6144}")
    def step_static(wrap):
        A(f"s_add_u32 s{S_N}, s{S_N}, 4")
        if wrap:
            A(f"s_cmp_ge_u32 s{S_N}, 128")
            A(f"s_cselect_b32 s{S_CUR}, s8, s{S_CUR}")
            A(f"s_cselect_b32 s{S_CUR+1}, s9, s{S_CUR+1}")
            A(f"s_and_b32 s{S_N}, s{S_N}, 127")
        A(f"s_cmp_ge_u32 s{S_N}, s{S_B1}")
        A(f"s_cselect_b32 s65, s{S_D1}, s{S_D0}")
        A(f"s_cmp_ge_u32 s{S_N}, s{S_B2}")
        A(f"s_cselect_b32 s65, s{S_D2}, s65")
        A(f"s_add_u32 s65, s65, s{S_N}")
        A(f"s_mul_i32 s{S_UOFF}, s65, 6144")
    g.stamp("issued T1")
    C("---- layernorm of batch w ----")
    A("s_waitcnt vmcnt(10)")
    g.stamp("x landed")
    E = XR + 8
    for k in range(5):
        A(f"v_lshlrev_b32 v{E+2*k}, 16, v{XR+k}")
        A(f"v_and_b32 v{E+2*k+1}, 0xffff0000, v{XR+k}")
    def allreduce(v, t, op, dpp, swaps):
        for ctl in dpp:
            A("s_nop 1")
            A(f"{op}_dpp v{v}, v{v}, v{v} {ctl} row_mask:0xf bank_mask:0xf")
        for sw in swaps:
            A(f"v_mov_b32 v{t}, v{v}")
            A("s_nop 1")
            A(f"{sw} v{v}, v{t}")
            A("s_nop 0")
            A(f"{op} v{v}, v{v}, v{t}")
    DPP4 = ("quad_perm:[1,0,3,2]", "quad_perm:[2,3,0,1]", "row_half_mirror", "row_mirror")
    SW2 = ("v_permlane16_swap_b32", "v_permlane32_swap_b32")
    S = XR + 20; T = XR + 21; MU = XR + 22; DD = XR + 24
    A(f"v_add_f32 v{S}, v{E}, v{E+1}")
    for k in range(2, 10):
        A(f"v_add_f32 v{S}, v{S}, v{E+k}")
    allreduce(S, T, "v_add_f32", DPP4, SW2)
    A(f"v_mul_f32 v{MU}, {f32(1/640.)}, v{S}")
    for k in range(10):
        A(f"v_sub_f32 v{DD+k}, v{E+k}, v{MU}")
    A(f"v_mul_f32 v{S}, v{DD}, v{DD}")
    for k in range(1, 10):
        A(f"v_fmac_f32 v{S}, v{DD+k}, v{DD+k}")
    allreduce(S, T, "v_add_f32", DPP4, SW2)
    ld(V_A, 0); ld(V_A, 1); ld(V_A, 2)
    A(f"v_mul_f32 v{S}, {f32(1/640.)}, v{S}")
    A(f"v_cvt_pk_bf16_f32 v{T}, v{MU}, v{S}")
    A(f"v_lshlrev_b32 v{MU}, 16, v{T}")
    A(f"v_and_b32 v{S}, 0xffff0000, v{T}")
    A(f"v_add_f32 v{S}, {f32(1e-5)}, v{S}")
    A(f"v_cvt_pk_bf16_f32 v{T}, v{S}, v{S}")
    A(f"v_and_b32 v{S}, 0xffff0000, v{T}")
    A(f"v_sqrt_f32 v{S}, v{S}")
    for k in range(10):
        A(f"v_sub_f32 v{DD+k}, v{E+k}, v{MU}")
    A(f"v_cvt_pk_bf16_f32 v{T}, v{S}, v{S}")
    A(f"v_and_b32 v{S}, 0xffff0000, v{T}")
    A(f"v_rcp_f32 v{T}, v{S}")
    for k in range(5):
        A(f"v_cvt_pk_bf16_f32 v{XR+k}, v{DD+2*k}, v{DD+2*k+1}")
    for k in range(5):
        A(f"v_lshlrev_b32 v{DD+2*k}, 16, v{XR+k}")
        A(f"v_and_b32 v{DD+2*k+1}, 0xffff0000, v{XR+k}")
    C("quotient with one Newton correction: q = d*r; q += (d - q*s)*r")
    for k in range(10):
        A(f"v_mul_f32 v{E+k}, v{DD+k}, v{T}")
    for k in range(10):
        A(f"v_fma_f32 v{DD+k}, -v{E+k}, v{S}, v{DD+k}")
    for k in range(10):
        A(f"v_fmac_f32 v{E+k}, v{DD+k}, v{T}")
    for k in range(5):
        A(f"v_cvt_pk_bf16_f32 v{XR+k}, v{E+2*k}, v{E+2*k+1}")
    A(f"s_mul_i32 s70, s{S_W}, {XNP}")
    A(f"v_add_u32 v{V_A2}, s70, v{V_A2}")
    A(f"v_add_u32 v{V_A3}, s70, v{V_A3}")
    A(f"ds_write_b128 v{V_A2}, v[{XR}:{XR+3}] offset:{L_XN}")
    A(f"ds_write_b32 v{V_A3}, v{XR+4} offset:{L_XN+1024}")
    ld(V_A, 3); ld(V_A, 4); ld(V_A, 5)
    step_simple()
    C("---- phase 1 projection: D[col][batch] ----")
    A(f"v_lshrrev_b32 v{V_T}, 4, v{V_LANE}")
    A(f"v_bfe_u32 v{V_U}, v{V_LANE}, 2, 2")
    A(f"v_lshl_add_u32 v{V_S0}, v{V_T}, 2, v{V_U}")
    A(f"v_bfe_u32 v{V_S1}, v{V_S0}, 1, 2")
    A(f"v_xor_b32 v{V_S1}, s{S_W}, v{V_S1}")
    A(f"v_lshlrev_b32 v{V_S1}, 5, v{V_S1}")
    A(f"v_lshl_add_u32 v{V_S1}, v{V_S0}, 7, v{V_S1}")
    A(f"v_and_b32 v{V_U}, 3, v{V_LANE}")
    A(f"v_lshl_add_u32 v{V_A2}, v{V_U}, 3, v{V_S1}")
    A(f"v_mul_u32_u24 v{V_A3}, {XNP}, v{V_U}")
    A(f"v_lshl_add_u32 v{V_A3}, v{V_T}, 3, v{V_A3}")
    A(f"s_mul_i32 s70, s66, 640")
    A(f"s_add_u32 s70, s70, {L_XN}")
    A(f"v_add_u32 v{V_A3}, s70, v{V_A3}")
    A(f"v_lshlrev_b32 v{V_PA}, 9, v{V_U}")
    A(f"v_lshl_add_u32 v{V_PA}, v{V_T}, 5, v{V_PA}")
    A(f"v_and_b32 v{V_S0}, 4, v{V_LANE}")
    A(f"v_lshl_add_u32 v{V_PA}, v{V_S0}, 2, v{V_PA}")
    A(f"s_lshl_b32 s70, s2, 11")
    A(f"s_lshl_b32 s71, s{S_W}, 7")
    A(f"s_add_u32 s70, s70, s71")
    A(f"s_add_u32 s70, s70, {WS_QX}")
    A(f"v_cmp_ne_u32 vcc, 0, v{V_S0}")
    A("s_waitcnt vmcnt(6) lgkmcnt(0)")
    A(f"s_add_u32 s{S_TAG}, s{S_E}, 0x01010101")
    A("s_barrier")
    g.stamp("T1 landed")
    WA = V_X; XB = V_X + 40
    for s in range(10):
        A(f"ds_read_b64_tr_b16 v[{WA+4*s}:{WA+4*s+1}], v{V_A2} offset:{L_T+4096*s}")
        A(f"ds_read_b64_tr_b16 v[{WA+4*s+2}:{WA+4*s+3}], v{V_A2} offset:{L_T+4096*s+2048}")
        A(f"ds_read2_b64 v[{XB+4*s}:{XB+4*s+3}], v{V_A3} offset0:{8*s} offset1:{8*s+4}")
        if s >= 4:
            A(f"s_waitcnt lgkmcnt(12)")
            m = s - 4
            A(f"v_mfma_f32_16x16x32_bf16 v[{V_PD}:{V_PD+3}], v[{WA+4*m}:{WA+4*m+3}], v[{XB+4*m}:{XB+4*m+3}], " + ("0" if m == 0 else f"v[{V_PD}:{V_PD+3}]"))
    for m in range(6, 10):
        A(f"s_waitcnt lgkmcnt({3*(9-m)})")
        A(f"v_mfma_f32_16x16x32_bf16 v[{V_PD}:{V_PD+3}], v[{WA+4*m}:{WA+4*m+3}], v[{XB+4*m}:{XB+4*m+3}], v[{V_PD}:{V_PD+3}]")
    A(f"v_mov_b32 v{V_TAG}, s{S_TAG}")
    A(f"v_mov_b32 v{V_Q+1}, s{S_TAG}")
    A(f"v_mov_b32 v{V_Q+3}, s{S_TAG}")
    A("s_mov_b32 exec_lo, 0x00ff00ff")
    A("s_mov_b32 exec_hi, 0x00ff00ff")
    A("s_nop 3")
    A(f"v_cndmask_b32 v{V_Q}, v{V_PD}, v{V_PD+2}, vcc")
    A(f"v_cndmask_b32 v{V_Q+2}, v{V_PD+1}, v{V_PD+3}, vcc")
    A(f"buffer_store_dwordx4 v[{V_Q}:{V_Q+3}], v{V_PA}, s[{S_P1}:{S_P1+3}], s70 offen sc1")
    A("s_mov_b64 exec, -1")
    g.stamp("published q part")
    C("---- extra K units while q is on its way; scalar set-up rides in the gaps ----")
    side = []
    B = side.append
    B(f"s_add_u32 s65, s2, 512")
    B(f"s_mul_i32 s65, s65, 43691")
    B(f"s_lshr_b32 s65, s65, 18")
    B(f"s_mul_i32 s66, s65, 6")
    B(f"s_max_u32 s{S_PF}, s66, 512")
    B(f"s_add_u32 s66, s66, 6")
    B(f"s_sub_u32 s{S_G}, s66, s{S_PF}")
    B(f"s_mul_i32 s{S_LIM}, s{S_G}, {D}")
    B(f"s_cmp_eq_u32 s{S_G}, 6")
    B(f"s_movk_i32 s{S_MG}, 16384")
    B(f"s_cselect_b32 s{S_MG}, 10923, s{S_MG}")
    B(f"s_sub_u32 s65, s65, 85")
    B(f"s_lshl_b32 s65, s65, 8")
    B(f"s_add_u32 s74, s65, {WS_CT}")
    B(f"s_add_u32 s{S_CTP}, s24, s74")
    B(f"s_addc_u32 s{S_CTP+1}, s25, 0")
    B(f"s_sub_u32 s{S_PF}, s{S_PF}, 512")
    B(f"s_mul_i32 s{S_RB}, s2, 52429")
    B(f"s_lshr_b32 s{S_RB}, s{S_RB}, 18")
    B(f"s_mul_i32 s66, s{S_RB}, 5")
    B(f"s_sub_u32 s67, s2, s66")
    B(f"s_lshl_b32 s67, s67, 8")
    B(f"s_and_b32 s66, s{S_RB}, 31")
    B(f"s_mul_i32 s66, s66, {192*1280}")
    B(f"s_add_u32 s66, s66, s67")
    B([f"s_cmp_lt_u32 s{S_RB}, 32", f"s_cselect_b32 s{S_T2}, s12, s18", f"s_cselect_b32 s{S_T2+1}, s13, s19"])
    B([f"s_cmp_lt_u32 s2, 200", f"s_cselect_b32 s{S_T2+2}, {191*1280+256}, 0", f"s_cselect_b32 s66, s66, 0"])
    B([f"s_add_u32 s{S_T2}, s{S_T2}, s66", f"s_addc_u32 s{S_T2+1}, s{S_T2+1}, 0", f"s_mov_b32 s{S_T2+3}, 0x00020000"])
    B(f"v_lshrrev_b32 v{V_T}, 4, v{V_LANE}")
    B(f"v_bfe_u32 v{V_U}, v{V_LANE}, 1, 3")
    B(f"v_xor_b32 v{V_U}, v{V_U}, v{V_T}")
    B(f"v_mul_u32_u24 v{V_T2E}, 1280, v{V_T}")
    B(f"v_lshl_add_u32 v{V_T2E}, v{V_U}, 5, v{V_T2E}")
    B(f"v_and_b32 v{V_U}, 1, v{V_LANE}")
    B(f"v_lshl_add_u32 v{V_T2E}, v{V_U}, 4, v{V_T2E}")
    B(f"v_xor_b32 v{V_T2O}, 128, v{V_T2E}")
    for j in range(3):
        B(f"s_add_u32 s65, s2, {256*j}")
        B(f"s_mul_i32 s65, s65, 43691")
        B(f"s_lshr_b32 s65, s65, 18")
        B(f"s_and_b32 s66, s65, 31")
        B(f"s_lshr_b32 s65, s65, 5")
        B(f"s_mul_i32 s66, s66, {6*2048}")
        B(f"s_lshl_b32 s65, s65, 9")
        B(f"s_add_u32 s65, s65, s66")
        B(f"s_add_u32 s65, s65, s71")
        B(f"s_add_u32 s{67+j}, s65, {WS_QX}")
    B(f"v_lshrrev_b32 v{V_T}, 3, v{V_LANE}")
    B(f"v_and_b32 v{V_U}, 7, v{V_LANE}")
    B(f"v_lshlrev_b32 v{V_SCG}, 3, v{V_T}")
    B(f"s_lshl_b32 s65, s{S_W}, 6")
    B(f"s_add_u32 s65, s65, {L_SC}")
    B(f"v_add_u32 v{V_SCR}, s65, v{V_SCG}")
    B(f"v_and_b32 v{V_S0}, 4, v{V_U}")
    B(f"v_add_u32 v{V_SCW}, v{V_SCR}, v{V_S0}")
    B(f"v_lshlrev_b32 v{V_QA}, 4, v{V_U}")
    B(f"v_add_u32 v{V_QA}, {L_QB}, v{V_QA}")
    B(f"v_lshl_add_u32 v{V_OWA}, v{V_U}, 3, v{V_T}")
    B(f"s_mul_i32 s65, s{S_W}, 768")
    B(f"s_add_u32 s65, s65, {L_OW}")
    B(f"v_lshl_add_u32 v{V_OWA}, v{V_OWA}, 2, s65")
    B(f"v_and_b32 v{V_S0}, 31, v{V_LANE}")
    B(f"v_min_u32 v{V_S0}, 23, v{V_S0}")
    B(f"v_lshlrev_b32 v{V_MLA}, 4, v{V_S0}")
    B(f"v_min_u32 v{V_T}, 5, v{V_T}")
    B(f"v_lshlrev_b32 v{V_PA}, 11, v{V_T}")
    B(f"v_lshl_add_u32 v{V_PA}, v{V_U}, 4, v{V_PA}")
    B(f"v_lshrrev_b32 v{V_T}, 1, v{V_T}")
    B(f"v_lshlrev_b32 v{V_A2}, 7, v{V_T}")
    B(f"v_lshl_add_u32 v{V_A2}, v{V_U}, 2, v{V_A2}")
    B(f"s_lshl_b32 s65, s{S_W}, 5")
    B(f"v_add_u32 v{V_A2}, s65, v{V_A2}")
    B(f"s_mov_b32 s{S_SPIN}, {cfg['spin']}")
    for k in range(24):
        B(f"v_mov_b32 v{V_ACC+k}, 0")
    B(f"v_mov_b32 v{V_M}, 0xff7f0000")
    B(f"v_mov_b32 v{V_L}, 0")
    B(f"s_mov_b32 s{S_SEL0}, 0x07060500")
    B(f"s_mov_b32 s{S_SEL0+1}, 0x07060501")
    B(f"s_mov_b32 s{S_SEL0+2}, 0x07060502")
    B(f"s_mov_b32 s{S_SEL0+3}, 0x07060503")
    B(f"s_mov_b32 s{S_SELA}, 0x0c0c0400")
    B(f"s_mov_b32 s{S_SELB}, 0x04000c0c")
    B(f"s_mov_b32 s{S_MSK}, 0xffffff00")
    B(f"s_mov_b32 s{S_EID}, 0")
    B(f"s_mov_b32 s{S_EVT}, s{S_B1}")
    B(f"s_mov_b32 s{S_PCUR}, s2")
    B(f"s_add_u32 s{S_NC}, s{S_W}, {4*(NX+2)}")
    chunks = []
    i = 0
    while i < len(side):
        it = side[i]
        if isinstance(it, str) and (it.startswith("s_cmp") or (it.startswith(f"s_add_u32 s{S_CTP},"))):
            n = 3 if it.startswith("s_cmp") else 2
            chunks.append(side[i:i+n]); i += n
        elif isinstance(it, str):
            chunks.append([it]); i += 1
        else:
            chunks.append(it); i += 1
    nld = 6*NX
    per = -(-len(chunks) // max(nld - 2, 1))
    ci = 0
    for x in range(NX):
        for k in range(6):
            if HL: A(f"s_waitcnt vmcnt({HL-1})")
            ld(V_X + 24*x, k)
            for ch in chunks[ci:ci+per]:
                for s_ in ch: A(s_)
            ci += per
        step_simple()
    assert ci >= len(chunks)
    C("first member of the claim group clears the group's counter")
    A(f"s_cmp_lg_u32 s2, s{S_PF}")
    A("s_cbranch_scc1 L_noclr")
    A(f"s_cmp_lg_u32 s{S_W}, 0")
    A("s_cbranch_scc1 L_noclr")
    A("s_mov_b64 exec, 1")
    A(f"buffer_store_dword v{V_L}, v{V_L}, s[{S_WS}:{S_WS+3}], s74 offen sc1")
    A("s_mov_b64 exec, -1")
    L("L_noclr")
    for j in range(3):
        A(f"buffer_load_dwordx4 v[{V_PD+4*j}:{V_PD+4*j+3}], v{V_PA}, s[{S_WS}:{S_WS+3}], s{67+j} offen sc1")
    for k in range(6):
        if HL: A(f"s_waitcnt vmcnt({HL-1+3})")
        ld(V_B, k)
    step_simple()
    A("s_waitcnt vmcnt(6)")
    g.stamp("q poll 1 back")
    L("L_qchk")
    A(f"v_xor_b32 v{V_S0}, v{V_PD+1}, v{V_TAG}")
    for k in range(1, 6):
        A(f"v_bitop3_b32 v{V_S0}, v{V_PD+2*k+1}, v{V_TAG}, v{V_S0} bitop3:0xbe")
    A(f"v_cmp_ne_u32 vcc, 0, v{V_S0}")
    A("s_nop 1")
    A("s_cbranch_vccz L_qok")
    A(f"s_sub_u32 s{S_SPIN}, s{S_SPIN}, 1")
    A("s_cbranch_scc1 L_end")
    for j in range(3):
        A(f"buffer_load_dwordx4 v[{V_PD+4*j}:{V_PD+4*j+3}], v{V_PA}, s[{S_WS}:{S_WS+3}], s{67+j} offen sc1")
    A("s_waitcnt vmcnt(0)")
    A("s_branch L_qchk")
    L("L_qok")
    for k in range(6):
        A(f"v_add_f32_dpp v{V_PD+2*k}, v{V_PD+2*k}, v{V_PD+2*k} row_ror:8 row_mask:0xf bank_mask:0xf")
    A("s_mov_b32 exec_hi, 0x0000ffff")
    for j in range(3):
        A(f"v_cvt_pk_bf16_f32 v{V_PD+4*j}, v{V_PD+4*j}, v{V_PD+4*j+2}")
    for j in range(3):
        A(f"ds_write_b32 v{V_A2}, v{V_PD+4*j} offset:{L_QB+384*j}")
    A("s_mov_b32 exec_hi, -1")
    A("s_waitcnt lgkmcnt(0)")
    A("s_barrier")
    for j in range(3):
        A(f"ds_read_b128 v[{V_Q+4*j}:{V_Q+4*j+3}], v{V_QA} offset:{128*j}")
    A(f"s_and_b32 s75, s{S_TAG}, 0xffff")
    A("s_waitcnt lgkmcnt(0)")
    g.stamp("q ready")

    def kunit(base, waits, issue):
        A(f"v_mov_b32 v{V_S0}, 0")
        A(f"v_mov_b32 v{V_S1}, 0")
        for k in range(6):
            if waits[k] is not None: A(f"s_waitcnt vmcnt({waits[k]})")
            if issue is not None: ld(issue, k)
            sv = V_S0 if k < 3 else V_S1
            for e in range(4):
                A(f"v_dot2c_f32_bf16 v{sv}, v{base+4*k+e}, v{V_Q+4*(k%3)+e}")
        A(f"v_add_f32_dpp v{V_T}, v{V_S0}, v{V_S0} row_half_mirror row_mask:0xf bank_mask:0x5")
        A("s_nop 1")
        A(f"v_add_f32_dpp v{V_T}, v{V_S1}, v{V_S1} row_half_mirror row_mask:0xf bank_mask:0xa")
        A("s_nop 1")
        A(f"v_add_f32_dpp v{V_T}, v{V_T}, v{V_T} quad_perm:[1,0,3,2] row_mask:0xf bank_mask:0xf")
        A("s_nop 1")
        A(f"v_add_f32_dpp v{V_T}, v{V_T}, v{V_T} quad_perm:[2,3,0,1] row_mask:0xf bank_mask:0xf")
        A(f"v_cvt_pk_bf16_f32 v{V_T}, v{V_T}, v{V_T}")
        A(f"v_and_b32 v{V_T}, 0xffff0000, v{V_T}")
        A(f"v_mul_f32 v{V_T}, {f32(192**-0.5)}, v{V_T}")
        A(f"v_cvt_pk_bf16_f32 v{V_T}, v{V_T}, v{V_T}")
        A(f"v_and_b32 v{V_T}, 0xffff0000, v{V_T}")
        A(f"v_or_b32 v{V_U}, s75, v{V_T}")
        A(f"v_max_f32 v{V_S1}, v{V_M}, v{V_T}")
        A(f"ds_write_b32 v{V_SCW}, v{V_U}")
        A(f"v_sub_f32 v{V_S0}, v{V_M}, v{V_S1}")
        A(f"v_sub_f32 v{V_T}, v{V_T}, v{V_S1}")
        A(f"v_mul_f32 v{V_S0}, {f32(LOG2E)}, v{V_S0}")
        A(f"v_mul_f32 v{V_T}, {f32(LOG2E)}, v{V_T}")
        A(f"v_exp_f32 v{V_S0}, v{V_S0}")
        A(f"v_exp_f32 v{V_T}, v{V_T}")
        A(f"v_mov_b32 v{V_M}, v{V_S1}")
        A(f"v_add_u32 v{V_SCW}, 256, v{V_SCW}")
        A(f"v_fma_f32 v{V_L}, v{V_L}, v{V_S0}, v{V_T}")
    def event(tag, handler):
        A(f"s_cmp_ge_u32 s{S_NC}, s{S_EVT}")
        A(f"s_cbranch_scc0 L_ne_{tag}")
        A(f"s_call_b64 s[{S_RET}:{S_RET+1}], {handler}")
        L(f"L_ne_{tag}")
        A(f"s_add_u32 s{S_NC}, s{S_NC}, 4")

    C("---- K: catch up, then the steady loop ----")
    kunit(V_A, [None]*6, None)
    for k in range(6): ld(V_A, k)
    for x in range(NX):
        kunit(V_X + 24*x, [None]*6, None)
    kunit(V_B, [11, 10, 9, 8, 7, 6], None)
    g.stamp("extras done")
    A(f"s_mov_b32 s{S_CNT}, {(32 - NX - 2)//2}")
    L("L_kloop")
    step_static(False)
    event("ka", "H_K")
    kunit(V_A, [5]*6, V_B)
    step_static(True)
    event("kb", "H_K")
    kunit(V_B, [5]*6, V_A)
    A(f"s_sub_u32 s{S_CNT}, s{S_CNT}, 1")
    A(f"s_cmp_lg_u32 s{S_CNT}, 0")
    A("s_cbranch_scc1 L_kloop")
    g.stamp("K done")
    A(f"s_call_b64 s[{S_RET}:{S_RET+1}], H_KS")
    A(f"s_mov_b32 s{S_PCUR}, s2")
    A(f"s_mov_b32 s{S_EID}, 0")
    A(f"s_sub_u32 s{S_EVT}, s{S_B1}, 8")
    A(f"s_mov_b32 s{S_NC}, s{S_W}")
    A(f"s_call_b64 s[{S_RET}:{S_RET+1}], H_VS")

    def pprep():
        A(f"v_and_b32 v{V_S0}, 0xffff0000, v{V_SCD}")
        A(f"v_and_b32 v{V_S1}, 0xffff0000, v{V_SCD+1}")
        A(f"v_sub_f32 v{V_S0}, v{V_S0}, v{V_M}")
        A(f"v_sub_f32 v{V_S1}, v{V_S1}, v{V_M}")
        A(f"v_mul_f32 v{V_S0}, {f32(LOG2E)}, v{V_S0}")
        A(f"v_mul_f32 v{V_S1}, {f32(LOG2E)}, v{V_S1}")
        A(f"v_exp_f32 v{V_S0}, v{V_S0}")
        A(f"v_exp_f32 v{V_S1}, v{V_S1}")
        A(f"v_mul_f32 v{V_S0}, v{V_S0}, v{V_L}")
        A(f"v_mul_f32 v{V_S1}, v{V_S1}, v{V_L}")
        A(f"v_cvt_pk_bf16_f32 v{V_T}, v{V_S0}, v{V_S1}")
        A(f"v_and_b32 v{V_P0L}, 0xffff, v{V_T}")
        A(f"v_lshlrev_b32 v{V_P0H}, 16, v{V_T}")
        A(f"v_lshrrev_b32 v{V_P1L}, 16, v{V_T}")
        A(f"v_and_b32 v{V_P1H}, 0xffff0000, v{V_T}")
    def plds():
        A(f"ds_read_b64 v[{V_SCD}:{V_SCD+1}], v{V_SCR}")
        A(f"v_add_u32 v{V_SCR}, 256, v{V_SCR}")
        A("s_waitcnt lgkmcnt(0)")
        pprep()
    def t2ld(t):
        if t == 0:
            A(f"s_mul_i32 s66, s{S_W}, {48*256}")
            A(f"s_add_u32 m0, s66, {L_T}")
            A(f"s_mul_i32 s{S_SOFF}, s{S_W}, {48*1280}")
        else:
            A(f"s_add_u32 m0, m0, 1024")
            A(f"s_add_u32 s{S_SOFF}, s{S_SOFF}, {4*1280}")
        A(f"buffer_load_dwordx4 v{V_T2O if t & 1 else V_T2E}, s[{S_T2}:{S_T2+3}], s{S_SOFF} offen {pol} lds")
    def vdots(base, k):
        pl, ph = (V_P0L, V_P0H) if k < 3 else (V_P1L, V_P1H)
        for e in range(4):
            a = V_ACC + 8*(k % 3) + 2*e
            A(f"v_dot2c_f32_bf16 v{a}, v{base+4*k+e}, v{pl}")
            A(f"v_dot2c_f32_bf16 v{a+1}, v{base+4*k+e}, v{ph}")
    def vunit(base, wait, issue):
        for k in range(6):
            A(f"s_waitcnt vmcnt({wait})")
            ld(issue, k)
            vdots(base, k)
    def claim():
        A(f"s_mov_b32 s{S_CLM}, 1")
        A(f"s_atomic_add s{S_CLM}, s[{S_CTP}:{S_CTP+1}], 0 glc")
    C("---- V: static part ----")
    A(f"s_mov_b32 s{S_CNT}, {(TS-2)//2}")
    L("L_vloop")
    step_static(False)
    event("va", "H_V")
    plds()
    vunit(V_A, 5, V_B)
    step_static(False)
    event("vb", "H_V")
    plds()
    vunit(V_B, 5, V_A)
    A(f"s_sub_u32 s{S_CNT}, s{S_CNT}, 1")
    A(f"s_cmp_lg_u32 s{S_CNT}, 0")
    A("s_cbranch_scc1 L_vloop")
    g.stamp("V static loop done")
    step_static(False)
    event("vc", "H_V")
    plds()
    claim()
    vunit(V_A, 5, V_B)
    plds()
    A("s_branch L_db2")
    C("---- V: units claimed from the group's pool ----")
    for tag, cur, nxt in (("a", V_A, V_B), ("b", V_B, V_A)):
        L(f"L_d{tag}")
        A("s_waitcnt vmcnt(6)")
        L(f"L_d{tag}c")
        A(f"v_xor_b32 v{V_S0}, v{V_SCD}, v{V_TAG}")
        A(f"v_bitop3_b32 v{V_S0}, v{V_SCD+1}, v{V_TAG}, v{V_S0} bitop3:0xbe")
        A(f"v_and_b32 v{V_S0}, 0xffff, v{V_S0}")
        A(f"v_cmp_ne_u32 vcc, 0, v{V_S0}")
        A("s_nop 1")
        A(f"s_cbranch_vccnz L_d{tag}r")
        pprep()
        A("s_waitcnt lgkmcnt(0)")
        L(f"L_d{tag}2")
        A(f"s_cmp_ge_u32 s{S_CLM}, s{S_LIM}")
        A(f"s_cbranch_scc1 L_tail{tag}")
        if cfg["corder"] == "rr":
            A(f"s_mul_i32 s65, s{S_CLM}, s{S_MG}")
            A(f"s_lshr_b32 s65, s65, 16")
            A(f"s_mul_i32 s66, s65, s{S_G}")
            A(f"s_sub_u32 s66, s{S_CLM}, s66")
        else:
            A(f"s_mul_i32 s66, s{S_CLM}, {-(-65536//D)}")
            A(f"s_lshr_b32 s66, s66, 16")
            A(f"s_mul_i32 s65, s66, {D}")
            A(f"s_sub_u32 s65, s{S_CLM}, s65")
        claim()
        A(f"s_add_u32 s66, s66, s{S_PF}")
        A(f"s_mul_i32 s67, s66, {D}")
        A(f"s_add_u32 s67, s67, s65")
        A(f"s_lshl_b32 s67, s67, 6")
        A(f"s_add_u32 s{S_SCO}, s67, {WS_SC}")
        A(f"buffer_load_dwordx2 v[{V_SCD}:{V_SCD+1}], v{V_SCG}, s[{S_WS}:{S_WS+3}], s{S_SCO} offen sc1")
        A(f"s_lshl_b32 s66, s66, 7")
        A(f"s_add_u32 s66, s66, {128*513 + 1}")
        A(f"s_mul_hi_u32 s66, s66, 0xaaaaaaab")
        A(f"s_lshr_b32 s66, s66, 1")
        A(f"s_add_u32 s66, s66, s65")
        A(f"s_sub_u32 s66, s66, {D}")
        A(f"s_mul_i32 s{S_UOFF}, s66, 6144")
        vunit(cur, 6, nxt)
    A("s_branch L_da")
    for tag in "ab":
        L(f"L_d{tag}r")
        A(f"s_sub_u32 s{S_SPIN}, s{S_SPIN}, 1")
        A("s_cbranch_scc1 L_end")
        A(f"buffer_load_dwordx2 v[{V_SCD}:{V_SCD+1}], v{V_SCG}, s[{S_WS}:{S_WS+3}], s{S_SCO} offen sc1")
        A("s_waitcnt vmcnt(0)")
        A(f"s_branch L_d{tag}c")
    for tag, cur in (("a", V_A), ("b", V_B)):
        L(f"L_tail{tag}")
        g.stamp("pool empty")
        for k in range(6):
            A(f"s_waitcnt vmcnt({5 + k})")
            t2ld(2*k); t2ld(2*k+1)
            vdots(cur, k)
        if tag == "a": A("s_branch L_tail")
    L("L_tail")
    g.stamp("last unit done")
    def wave_reduce():
        for j in range(3):
            for e in range(4):
                a = V_ACC + 8*j + e
                A(f"v_permlane32_swap_b32 v{a}, v{a+4}")
        for j in range(3):
            for e in range(4):
                a = V_ACC + 8*j + e
                A(f"v_add_f32 v{a}, v{a}, v{a+4}")
        for j in range(3):
            for e in range(2):
                a = V_ACC + 8*j + e
                A(f"v_permlane16_swap_b32 v{a}, v{a+2}")
        for j in range(3):
            for e in range(2):
                a = V_ACC + 8*j + e
                A(f"v_add_f32 v{a}, v{a}, v{a+2}")
        for j in range(3):
            a = V_ACC + 8*j
            A(f"v_add_f32_dpp v{a+2}, v{a}, v{a} row_ror:8 row_mask:0xf bank_mask:0x3")
            A(f"v_add_f32_dpp v{a+2}, v{a+1}, v{a+1} row_ror:8 row_mask:0xf bank_mask:0xc")
        for j in range(3):
            A(f"ds_write_b32 v{V_OWA}, v{V_ACC+8*j+2} offset:{256*j}")
    def tag4(r):
        for k in range(4):
            A(f"v_perm_b32 v{r+k}, v{r+k}, v{V_TAG}, s{S_SEL0+k}")
    def chk4(r, first):
        A(f"v_perm_b32 v{V_T}, v{r+1}, v{r}, s{S_SELA}")
        A(f"v_perm_b32 v{V_U}, v{r+3}, v{r+2}, s{S_SELB}")
        A(f"v_or_b32 v{V_T}, v{V_T}, v{V_U}")
        if first: A(f"v_xor_b32 v{V_S0}, v{V_T}, v{V_TAG}")
        else: A(f"v_bitop3_b32 v{V_S0}, v{V_T}, v{V_TAG}, v{V_S0} bitop3:0xbe")
    def strip4(r):
        for k in range(4):
            A(f"v_and_b32 v{r+k}, s{S_MSK}, v{r+k}")
    def publish_record(R):
        for w in range(4):
            A(f"ds_read_b128 v[{R+4*w}:{R+4*w+3}], v{V_A2} offset:{768*w}")
        A(f"s_mul_i32 s70, s{S_PCUR}, 768")
        A(f"s_add_u32 s70, s70, {WS_OX}")
        A("s_waitcnt lgkmcnt(2)")
        for k in range(4):
            A(f"v_add_f32 v{R+k}, v{R+k}, v{R+4+k}")
        A("s_waitcnt lgkmcnt(0)")
        for k in range(4):
            A(f"v_add_f32 v{R+8+k}, v{R+8+k}, v{R+12+k}")
        for k in range(4):
            A(f"v_add_f32 v{R+k}, v{R+k}, v{R+8+k}")
        tag4(R)
        A("s_mov_b32 exec_hi, 0x0000ffff")
        A(f"buffer_store_dwordx4 v[{R}:{R+3}], v{V_PA}, s[{S_WS}:{S_WS+3}], s70 offen sc1")
        A("s_mov_b32 exec_hi, -1")
    A("s_nop 2")
    wave_reduce()
    A(f"v_min_u32 v{V_T}, 47, v{V_LANE}")
    A(f"v_lshlrev_b32 v{V_PA}, 4, v{V_T}")
    A(f"v_add_u32 v{V_A2}, {L_OW + 2*3072}, v{V_PA}")
    A(f"s_mov_b32 s{S_SPIN}, {cfg['spin']}")
    A("s_waitcnt lgkmcnt(0)")
    A("s_barrier")
    A(f"s_cmp_lg_u32 s{S_W}, 0")
    A("s_cbranch_scc1 L_nopub")
    publish_record(V_X)
    L("L_nopub")
    g.stamp("record published")
    A("s_cmp_ge_u32 s2, 200")
    A("s_cbranch_scc1 L_stage3")
    C("---- stage 2 ----")
    R = V_X + 16
    WA = V_A; OBR = V_X + 48; D0 = V_X + 72; D1 = V_X + 76
    A("s_cmp_ge_u32 s2, 160")
    A("s_cbranch_scc1 L_ffn")
    C("wo tile: wave w gathers the six records of (batch w, head rb)")
    A(f"s_lshl_b32 s70, s{S_W}, 5")
    A(f"s_add_u32 s70, s70, s{S_RB}")
    A(f"s_mul_i32 s70, s70, {6*768}")
    A(f"s_add_u32 s70, s70, {WS_OX}")
    def opoll():
        for k in range(6):
            A(f"buffer_load_dwordx4 v[{R+4*k}:{R+4*k+3}], v{V_PA}, s[{S_WS}:{S_WS+3}], s70 offen offset:{768*k} sc1")
    def t2_operands(npoll):
        A(f"v_lshrrev_b32 v{V_T}, 4, v{V_LANE}")
        A(f"v_bfe_u32 v{V_U}, v{V_LANE}, 2, 2")
        A(f"v_lshl_add_u32 v{V_S0}, v{V_T}, 2, v{V_U}")
        A(f"v_and_b32 v{V_S1}, 7, v{V_S0}")
        A(f"s_lshl_b32 s66, s{S_W}, 1")
        A(f"v_xor_b32 v{V_S1}, s66, v{V_S1}")
        A(f"v_lshlrev_b32 v{V_S1}, 5, v{V_S1}")
        A(f"v_lshl_add_u32 v{V_S1}, v{V_S0}, 8, v{V_S1}")
        A(f"v_and_b32 v{V_U}, 3, v{V_LANE}")
        A(f"v_lshl_add_u32 v{V_T2E}, v{V_U}, 3, v{V_S1}")
        A(f"v_xor_b32 v{V_T2O}, 32, v{V_T2E}")
        A(f"v_mul_u32_u24 v{V_A3}, {OBP}, v{V_U}")
        A(f"v_lshl_add_u32 v{V_A3}, v{V_T}, 3, v{V_A3}")
        A(f"v_add_u32 v{V_A3}, {L_OB}, v{V_A3}")
        A(f"v_lshlrev_b32 v{V_QA}, 9, v{V_U}")
        A(f"v_lshl_add_u32 v{V_QA}, v{V_T}, 4, v{V_QA}")
        A(f"v_and_b32 v{V_S0}, 4, v{V_LANE}")
        A(f"v_lshl_add_u32 v{V_QA}, v{V_S0}, 4, v{V_QA}")
        A(f"v_cmp_ne_u32 s[68:69], 0, v{V_S0}")
        A(f"s_lshl_b32 s74, s2, 11")
        A(f"s_lshl_b32 s66, s{S_W}, 7")
        A(f"s_add_u32 s74, s74, s66")
        A(f"s_add_u32 s74, s74, {WS_YX}")
        A(f"s_waitcnt vmcnt({npoll})")
        A("s_barrier")
        g.stamp("T2 landed")
        for s in range(6):
            for nt, va in ((0, V_T2E), (1, V_T2O)):
                r = WA + 8*s + 4*nt
                A(f"ds_read_b64_tr_b16 v[{r}:{r+1}], v{va} offset:{L_T+8192*s}")
                A(f"ds_read_b64_tr_b16 v[{r+2}:{r+3}], v{va} offset:{L_T+8192*s+4096}")
    opoll()
    A(f"s_mul_i32 s66, s{S_W}, {OBP}")
    A(f"v_lshrrev_b32 v{V_A2}, 1, v{V_PA}")
    A(f"v_add_u32 v{V_A2}, s66, v{V_A2}")
    t2_operands(6)
    A("s_branch L_ochk")
    L("L_opoll")
    opoll()
    A(f"s_sub_u32 s{S_SPIN}, s{S_SPIN}, 1")
    A("s_cbranch_scc1 L_end")
    L("L_ochk")
    for k in range(6):
        A(f"s_waitcnt vmcnt({5-k})")
        chk4(R+4*k, k == 0)
    A(f"v_cmp_ne_u32 vcc, 0, v{V_S0}")
    A("s_nop 1")
    A("s_cbranch_vccnz L_opoll")
    g.stamp("records gathered")
    for k in range(6): strip4(R+4*k)
    for a, b in ((0, 1), (2, 3), (4, 5), (0, 2), (0, 4)):
        for k in range(0, 4, 2):
            A(f"v_pk_add_f32 v[{R+4*a+k}:{R+4*a+k+1}], v[{R+4*a+k}:{R+4*a+k+1}], v[{R+4*b+k}:{R+4*b+k+1}]")
    A(f"v_cvt_pk_bf16_f32 v{R}, v{R}, v{R+1}")
    A(f"v_cvt_pk_bf16_f32 v{R+1}, v{R+2}, v{R+3}")
    A(f"ds_write_b64 v{V_A2}, v[{R}:{R+1}] offset:{L_OB}")
    A("s_branch L_proj2")
    L("L_ffn")
    C("w2 tile: wave w gathers h partials of batch w: load j covers col-block j; lane = kh*8 + chunk + 16*wq")
    A(f"v_bfe_u32 v{V_T}, v{V_LANE}, 3, 1")
    A(f"v_lshrrev_b32 v{V_U}, 4, v{V_LANE}")
    A(f"v_and_b32 v{V_S1}, 7, v{V_LANE}")
    A(f"v_lshlrev_b32 v{V_PA}, 11, v{V_T}")
    A(f"v_lshl_add_u32 v{V_PA}, v{V_U}, 7, v{V_PA}")
    A(f"v_lshl_add_u32 v{V_PA}, v{V_S1}, 4, v{V_PA}")
    A(f"s_mul_i32 s70, s{S_RB}, {6*2048}")
    A(f"s_lshl_b32 s66, s{S_W}, 9")
    A(f"s_add_u32 s70, s70, s66")
    A(f"s_add_u32 s70, s70, {WS_QX}")
    A(f"s_add_u32 s71, s70, 4096")
    A(f"s_add_u32 s72, s70, 8192")
    A(f"v_lshlrev_b32 v{V_A2}, 5, v{V_U}")
    A(f"v_lshl_add_u32 v{V_A2}, v{V_S1}, 2, v{V_A2}")
    A(f"s_mul_i32 s66, s{S_W}, {OBP}")
    A(f"v_add_u32 v{V_A2}, s66, v{V_A2}")
    def hpoll():
        for j in range(3):
            A(f"buffer_load_dwordx4 v[{R+4*j}:{R+4*j+3}], v{V_PA}, s[{S_WS}:{S_WS+3}], s{70+j} offen sc1")
    hpoll()
    t2_operands(3)
    A("s_branch L_hchk")
    L("L_hpoll")
    hpoll()
    A(f"s_sub_u32 s{S_SPIN}, s{S_SPIN}, 1")
    A("s_cbranch_scc1 L_end")
    L("L_hchk")
    A("s_waitcnt vmcnt(0)")
    A(f"v_xor_b32 v{V_S0}, v{R+1}, v{V_TAG}")
    for k in range(1, 6):
        A(f"v_bitop3_b32 v{V_S0}, v{R+2*k+1}, v{V_TAG}, v{V_S0} bitop3:0xbe")
    A(f"v_cmp_ne_u32 vcc, 0, v{V_S0}")
    A("s_nop 1")
    A("s_cbranch_vccnz L_hpoll")
    for k in range(6):
        A(f"v_add_f32_dpp v{R+2*k}, v{R+2*k}, v{R+2*k} row_ror:8 row_mask:0xf bank_mask:0xf")
    for k in range(6):
        A(f"v_max_f32 v{R+2*k}, 0, v{R+2*k}")
    for j in range(3):
        A(f"v_cvt_pk_bf16_f32 v{R+4*j}, v{R+4*j}, v{R+4*j+2}")
    for j in range(3):
        A(f"ds_write_b32 v{V_A2}, v{R+4*j} offset:{L_OB+128*j}")
    L("L_proj2")
    A("s_waitcnt lgkmcnt(0)")
    A("s_barrier")
    for s in range(6):
        A(f"ds_read2_b64 v[{OBR+4*s}:{OBR+4*s+3}], v{V_A3} offset0:{8*s} offset1:{8*s+4}")
    for m in range(6):
        A(f"s_waitcnt lgkmcnt({5-m})")
        for nt, d in ((0, D0), (1, D1)):
            r = WA + 8*m + 4*nt
            A(f"v_mfma_f32_16x16x32_bf16 v[{d}:{d+3}], v[{r}:{r+3}], v[{OBR+4*m}:{OBR+4*m+3}], " + ("0" if m == 0 else f"v[{d}:{d+3}]"))
    A("s_mov_b32 exec_lo, 0x00ff00ff")
    A("s_mov_b32 exec_hi, 0x00ff00ff")
    A("s_nop 5")
    for k in range(4):
        A(f"v_cndmask_b32 v{D0+k}, v{D0+k}, v{D1+k}, s[68:69]")
    tag4(D0)
    A(f"buffer_store_dwordx4 v[{D0}:{D0+3}], v{V_QA}, s[{S_WS}:{S_WS+3}], s74 offen sc1")
    A("s_mov_b64 exec, -1")
    g.stamp("stage2 published")
    A("s_branch L_fin")
    L("L_stage3")
    C("---- stage 3: WGs 216..255, waves 2,3: consumer c = (wg-216)*2 + (w-2) ----")
    A("s_cmp_lt_u32 s2, 216")
    A("s_cbranch_scc1 L_fin")
    A(f"s_cmp_lt_u32 s{S_W}, 2")
    A("s_cbranch_scc1 L_fin")
    A("s_sub_u32 s66, s2, 217")
    A("s_lshl_b32 s66, s66, 1")
    A(f"s_add_u32 s66, s66, s{S_W}")
    A("s_mul_i32 s67, s66, 3277")
    A("s_lshr_b32 s67, s67, 16")
    A("s_mul_i32 s68, s67, 20")
    A("s_sub_u32 s68, s66, s68")
    A("s_lshr_b32 s69, s68, 2")
    A("s_and_b32 s70, s68, 3")
    A("s_lshl_b32 s69, s69, 11")
    A("s_lshl_b32 s70, s70, 7")
    A("s_add_u32 s70, s70, s69")
    A("s_lshl_b32 s69, s67, 9")
    A("s_add_u32 s70, s70, s69")
    A(f"s_add_u32 s70, s70, {WS_YX}")
    for t in range(1, 5):
        A(f"s_add_u32 s{70+t}, s70, {t*8*5*2048}")
    A(f"v_lshrrev_b32 v{V_T}, 3, v{V_LANE}")
    A(f"v_and_b32 v{V_U}, 7, v{V_LANE}")
    A(f"v_mul_u32_u24 v{V_PA}, {5*2048}, v{V_T}")
    A(f"v_lshl_add_u32 v{V_PA}, v{V_U}, 4, v{V_PA}")
    A(f"v_bfe_u32 v{V_S0}, v{V_LANE}, 4, 1")
    A(f"v_bfe_u32 v{V_S1}, v{V_LANE}, 5, 1")
    A(f"v_lshl_add_u32 v{V_S0}, v{V_S0}, 1, v{V_S1}")
    A(f"v_lshl_add_u32 v{V_S0}, v{V_U}, 2, v{V_S0}")
    A(f"v_lshlrev_b32 v{V_A2}, 1, v{V_S0}")
    A("s_mul_i32 s67, s67, 1280")
    A("s_lshl_b32 s68, s68, 6")
    A("s_add_u32 s75, s67, s68")
    A(f"buffer_load_ushort v{V_A3}, v{V_A2}, s[{S_X}:{S_X+3}], s75 offen")
    A(f"s_mov_b32 s{S_OUT}, s20")
    A(f"s_mov_b32 s{S_OUT+1}, s21")
    A(f"s_mov_b32 s{S_OUT+2}, 5120")
    A(f"s_mov_b32 s{S_OUT+3}, 0x00020000")
    L("L_ypoll")
    for t in range(5):
        A(f"buffer_load_dwordx4 v[{R+4*t}:{R+4*t+3}], v{V_PA}, s[{S_WS}:{S_WS+3}], s{70+t} offen sc1")
    A(f"s_sub_u32 s{S_SPIN}, s{S_SPIN}, 1")
    A("s_cbranch_scc1 L_end")
    for t in range(5):
        A(f"s_waitcnt vmcnt({4-t})")
        chk4(R+4*t, t == 0)
    A(f"v_cmp_ne_u32 vcc, 0, v{V_S0}")
    A("s_nop 1")
    A("s_cbranch_vccnz L_ypoll")
    g.stamp("y gathered")
    for t in range(5): strip4(R+4*t)
    for a, b in ((0, 1), (2, 3), (0, 2)):
        for k in range(0, 4, 2):
            A(f"v_pk_add_f32 v[{R+4*a+k}:{R+4*a+k+1}], v[{R+4*a+k}:{R+4*a+k+1}], v[{R+4*b+k}:{R+4*b+k+1}]")
    Z = R+16
    A(f"v_permlane32_swap_b32 v{Z}, v{Z+1}")
    A(f"v_permlane32_swap_b32 v{Z+2}, v{Z+3}")
    A(f"v_permlane32_swap_b32 v{R}, v{R+1}")
    A(f"v_permlane32_swap_b32 v{R+2}, v{R+3}")
    A(f"v_add_f32 v{Z}, v{Z}, v{Z+1}")
    A(f"v_add_f32 v{Z+2}, v{Z+2}, v{Z+3}")
    A(f"v_add_f32 v{R}, v{R}, v{R+1}")
    A(f"v_add_f32 v{R+2}, v{R+2}, v{R+3}")
    A(f"v_permlane16_swap_b32 v{Z}, v{Z+2}")
    A("s_nop 0")
    A(f"v_permlane16_swap_b32 v{R}, v{R+2}")
    A(f"v_add_f32 v{Z}, v{Z}, v{Z+2}")
    A("s_nop 0")
    A(f"v_add_f32 v{R}, v{R}, v{R+2}")
    A(f"v_add_f32_dpp v{Z}, v{Z}, v{Z} row_ror:8 row_mask:0xf bank_mask:0xf")
    A("s_nop 0")
    A(f"v_add_f32_dpp v{R}, v{R}, v{R} row_ror:8 row_mask:0xf bank_mask:0xf")
    A(f"v_lshlrev_b32 v{V_A3}, 16, v{V_A3}")
    A(f"v_cvt_pk_bf16_f32 v{V_T}, v{R}, v{Z}")
    A(f"v_and_b32 v{Z}, 0xffff0000, v{V_T}")
    A(f"v_lshlrev_b32 v{R}, 16, v{V_T}")
    A(f"v_mul_f32 v{V_U}, {f32(-LOG2E)}, v{Z}")
    A(f"v_exp_f32 v{V_U}, v{V_U}")
    A("s_nop 0")
    A(f"v_add_f32 v{V_U}, 1.0, v{V_U}")
    A(f"v_rcp_f32 v{V_U}, v{V_U}")
    A("s_nop 0")
    A(f"v_mul_f32 v{Z}, v{Z}, v{V_U}")
    A(f"v_cvt_pk_bf16_f32 v{V_T}, v{Z}, v{Z}")
    A(f"v_and_b32 v{Z}, 0xffff0000, v{V_T}")
    A(f"v_mul_f32 v{R}, v{R}, v{Z}")
    A(f"v_cvt_pk_bf16_f32 v{V_T}, v{R}, v{R}")
    A(f"v_and_b32 v{R}, 0xffff0000, v{V_T}")
    A(f"v_add_f32 v{R}, v{V_A3}, v{R}")
    A(f"v_cvt_pk_bf16_f32 v{V_T}, v{R}, v{R}")
    A("s_mov_b32 exec_lo, 0x00ff00ff")
    A("s_mov_b32 exec_hi, 0x00ff00ff")
    A(f"buffer_store_short v{V_T}, v{V_A2}, s[{S_OUT}:{S_OUT+3}], s75 offen {cfg['outpol']}")
    A("s_cmp_lg_u32 s66, 0")
    A("s_cbranch_scc1 L_noe")
    C("every workgroup has read the epoch word by now: advance it for the next launch")
    A("s_mov_b64 exec, 1")
    A(f"v_mov_b32 v{V_U}, {WS_E}")
    A(f"buffer_store_dword v{V_TAG}, v{V_U}, s[{S_WS}:{S_WS+3}], 0 offen {cfg['outpol']}")
    L("L_noe")
    A("s_mov_b64 exec, -1")
    g.stamp("out stored")
    L("L_fin")
    if cfg.get("diag_total"):
        L("L_dspin")
        A("s_memrealtime s[96:97]")
        A("s_waitcnt lgkmcnt(0)")
        A("s_sub_u32 s96, s96, s98")
        A(f"s_cmp_lt_u32 s96, {cfg['diag_total']}")
        A("s_cbranch_scc1 L_dspin")
    if cfg["stamps"]:
        A("s_waitcnt vmcnt(0)")
        A("s_memrealtime s[96:97]")
        A("s_getreg_b32 s66, hwreg(HW_REG_XCC_ID)")
        A("s_waitcnt lgkmcnt(0)")
        A(f"v_writelane_b32 v{V_ST}, s96, 61")
        A(f"v_writelane_b32 v{V_ST}, s98, 62")
        A(f"v_writelane_b32 v{V_ST}, s66, 63")
        A(f"s_sub_u32 s66, {cfg['spin']}, s{S_SPIN}")
        A(f"v_writelane_b32 v{V_ST}, s66, 60")
        A("s_lshl_b32 s66, s2, 10")
        A(f"s_add_u32 s66, s66, {WS_DBG}")
        A(f"v_lshlrev_b32 v{V_T}, 2, v0")
        A(f"buffer_store_dword v{V_ST}, v{V_T}, s[{S_WS}:{S_WS+3}], s66 offen")
    L("L_end")
    A("s_endpgm")

    def ml_offset(padd):
        A(f"s_add_u32 s70, s{S_PCUR}, {padd}")
        A(f"s_mul_i32 s70, s70, 43691")
        A(f"s_lshr_b32 s70, s70, 18")
        A(f"s_mul_i32 s70, s70, 384")
        A(f"s_add_u32 s70, s70, {WS_ML}")
    def ml_load():
        A(f"buffer_load_dwordx4 v[{V_MLD}:{V_MLD+3}], v{V_MLA}, s[{S_WS}:{S_WS+3}], s70 offen sc1")
    RET = f"s_setpc_b64 s[{S_RET}:{S_RET+1}]"
    C("---- K-loop events: end of a piece (0, 1), prefetch of the first region's (m,l) table (2) ----")
    L("H_K")
    A(f"s_cmp_lt_u32 s{S_EID}, 2")
    A("s_cbranch_scc1 H_K1")
    A(f"s_sub_u32 s{S_PCUR}, s{S_PCUR}, 512")
    ml_offset(0)
    A(f"s_add_u32 s{S_PCUR}, s{S_PCUR}, 512")
    ml_load()
    A(f"s_movk_i32 s{S_EVT}, 0x7fff")
    A(RET)
    L("H_K1")
    A(f"v_add_u32 v{V_QA}, 384, v{V_QA}")
    for j in range(3):
        A(f"ds_read_b128 v[{V_Q+4*j}:{V_Q+4*j+3}], v{V_QA} offset:{128*j}")
    A(f"s_cmp_eq_u32 s{S_EID}, 0")
    A(f"s_cselect_b32 s{S_EVT}, s{S_B2}, 120")
    A(f"s_add_u32 s{S_EID}, s{S_EID}, 1")
    L("H_KS")
    C("wave-level (max, sum) of the piece just finished -> table entry (piece, wave)")
    A(f"v_mov_b32 v{V_T}, v{V_M}")
    allreduce(V_T, V_U, "v_max_f32", ("row_half_mirror", "row_ror:8"), SW2)
    A(f"v_sub_f32 v{V_M}, v{V_M}, v{V_T}")
    A(f"v_mul_f32 v{V_M}, {f32(LOG2E)}, v{V_M}")
    A(f"v_exp_f32 v{V_M}, v{V_M}")
    A(f"s_lshl_b32 s70, s{S_PCUR}, 2")
    A(f"v_mul_f32 v{V_L}, v{V_L}, v{V_M}")
    allreduce(V_L, V_U, "v_add_f32", ("row_half_mirror", "row_ror:8"), SW2)
    A(f"s_add_u32 s70, s70, s{S_W}")
    A(f"s_lshl_b32 s70, s70, 4")
    A(f"s_add_u32 s70, s70, {WS_ML}")
    A(f"v_mov_b32 v{V_PD}, v{V_T}")
    A(f"v_mov_b32 v{V_PD+1}, v{V_TAG}")
    A(f"v_mov_b32 v{V_PD+2}, v{V_L}")
    A(f"v_mov_b32 v{V_PD+3}, v{V_TAG}")
    A(f"v_mov_b32 v{V_L}, 0")
    A(f"v_mov_b32 v{V_M}, 0xff7f0000")
    A("s_mov_b64 exec, 1")
    A(f"buffer_store_dwordx4 v[{V_PD}:{V_PD+3}], v{V_L}, s[{S_WS}:{S_WS+3}], s70 offen sc1")
    A("s_mov_b64 exec, -1")
    A(f"s_add_u32 s{S_PCUR}, s{S_PCUR}, 256")
    A("s_waitcnt lgkmcnt(0)")
    A(RET)
    C("---- V-loop events: even id = prefetch next region's table, odd id = end of a piece ----")
    L("H_V")
    A(f"s_bitcmp1_b32 s{S_EID}, 0")
    A("s_cbranch_scc1 H_V1")
    ml_offset(256)
    ml_load()
    A(f"s_add_u32 s{S_EVT}, s{S_EVT}, 8")
    A(f"s_add_u32 s{S_EID}, s{S_EID}, 1")
    A(RET)
    L("H_V1")
    wave_reduce()
    A(f"v_min_u32 v{V_T}, 47, v{V_LANE}")
    A(f"v_lshlrev_b32 v{V_PA}, 4, v{V_T}")
    A(f"s_lshr_b32 s66, s{S_EID}, 1")
    A(f"s_mul_i32 s67, s66, 3072")
    A(f"s_add_u32 s67, s67, {L_OW}")
    A(f"v_add_u32 v{V_A2}, s67, v{V_PA}")
    A(f"v_add_u32 v{V_OWA}, 3072, v{V_OWA}")
    A("s_waitcnt lgkmcnt(0)")
    for k in range(24):
        A(f"v_mov_b32 v{V_ACC+k}, 0")
    A("s_barrier")
    A(f"s_cmp_lg_u32 s{S_W}, s66")
    A("s_cbranch_scc1 H_V2")
    publish_record(V_X)
    L("H_V2")
    A(f"s_cmp_lg_u32 s{S_EID}, 1")
    A("s_cbranch_scc1 H_V3")
    A(f"s_cmp_lt_u32 s{S_W}, 2")
    A("s_cbranch_scc1 H_V3")
    C("waves 2,3 publish the scores of the units that go to the pool")
    half = D*64//2
    A(f"s_sub_u32 s67, s{S_W}, 2")
    A(f"s_mul_i32 s67, s67, {half}")
    A(f"v_min_u32 v{V_T}, {half//16 - 1}, v{V_LANE}")
    A(f"v_lshl_add_u32 v{V_T}, v{V_T}, 4, s67")
    A(f"ds_read_b128 v[{V_X}:{V_X+3}], v{V_T} offset:{L_SC + (128-D)*64}")
    A(f"s_mul_i32 s70, s2, {D*64}")
    A(f"s_add_u32 s70, s70, {WS_SC}")
    A("s_waitcnt lgkmcnt(0)")
    A(f"buffer_store_dwordx4 v[{V_X}:{V_X+3}], v{V_T}, s[{S_WS}:{S_WS+3}], s70 offen sc1")
    L("H_V3")
    A(f"s_add_u32 s{S_PCUR}, s{S_PCUR}, 256")
    A(f"s_sub_u32 s66, s{S_B2}, 8")
    A(f"s_cmp_eq_u32 s{S_EID}, 1")
    A(f"s_cselect_b32 s{S_EVT}, s66, 0x7fff")
    A(f"s_add_u32 s{S_EID}, s{S_EID}, 1")
    L("H_VS")
    C("region-level max and 1/sum from the 24 table entries")
    A(f"v_xor_b32 v{V_S0}, v{V_MLD+1}, v{V_TAG}")
    A(f"v_bitop3_b32 v{V_S0}, v{V_MLD+3}, v{V_TAG}, v{V_S0} bitop3:0xbe")
    A(f"v_cmp_ne_u32 vcc, 0, v{V_S0}")
    A("s_nop 1")
    A("s_cbranch_vccz H_VS1")
    A(f"s_sub_u32 s{S_SPIN}, s{S_SPIN}, 1")
    A("s_cbranch_scc1 L_end")
    ml_offset(0)
    ml_load()
    A("s_waitcnt vmcnt(0)")
    A("s_branch H_VS")
    L("H_VS1")
    A(f"v_mov_b32 v{V_M}, v{V_MLD}")
    allreduce(V_M, V_U, "v_max_f32", DPP4, SW2[:1])
    A(f"v_sub_f32 v{V_T}, v{V_MLD}, v{V_M}")
    A(f"v_mul_f32 v{V_T}, {f32(LOG2E)}, v{V_T}")
    A(f"v_exp_f32 v{V_T}, v{V_T}")
    A(f"v_mov_b32 v{V_L}, 0")
    A("s_mov_b32 exec_lo, 0x00ffffff")
    A("s_mov_b32 exec_hi, 0x00ffffff")
    A(f"v_mul_f32 v{V_L}, v{V_T}, v{V_MLD+2}")
    A("s_mov_b64 exec, -1")
    allreduce(V_L, V_U, "v_add_f32", DPP4, SW2[:1])
    A(f"v_rcp_f32 v{V_T}, v{V_L}")
    A("s_nop 0")
    A(f"v_fma_f32 v{V_U}, -v{V_L}, v{V_T}, 1.0")
    A(f"v_fma_f32 v{V_L}, v{V_U}, v{V_T}, v{V_T}")
    A(RET)
    o.append('.section .rodata,"a"')
    o.append(".p2align 6")
    o.append(f".amdhsa_kernel {name}")
    o.append(f"  .amdhsa_next_free_vgpr {V_END}")
    o.append("  .amdhsa_next_free_sgpr 102")
    o.append(f"  .amdhsa_accum_offset {V_END}")
    o.append("  .amdhsa_group_segment_fixed_size 0")
    o.append("  .amdhsa_kernarg_size 88")
    o.append("  .amdhsa_user_sgpr_count 2")
    o.append("  .amdhsa_user_sgpr_kernarg_segment_ptr 1")
    o.append("  .amdhsa_system_sgpr_workgroup_id_x 1")
    o.append("  .amdhsa_float_denorm_mode_32 3")
    o.append(".end_amdhsa_kernel")
    assert L_END <= cfg["lds"], L_END
    return "\n".join(o) + "\n"

if __name__ == "__main__":
    out = sys.argv[1]
    kw = json.loads(sys.argv[2]) if len(sys.argv) > 2 else {}
    open(out, "w").write(build(**kw))
```

```python
import sys, json, struct

KNAME = "recurrent_scan__mha_block_cached__dense_activation_relu__decode_kernel"
LOG2E = 1.4426950408889634

def f32(x):
    return "0x%08x" % struct.unpack("<I", struct.pack("<f", x))[0]

NBKV = 4*32*4096*384
WS_E   = 0
WS_ML  = 0x1000
WS_QX  = 0x10000
WS_OX  = 0x50000
WS_YX  = 0xe0000
WS_CT  = 0x144000
WS_SC  = 0x148000
WS_END = 0x188000
WS_DBG = 0x200000
L_T   = 0
L_XN  = 49152
XNP   = 1344
L_QB  = L_XN + 4*XNP
L_OB  = L_QB + 3*384
OBP   = 448
L_SC  = L_OB + 4*OBP
L_OW  = L_SC + 4096
L_CN  = L_OW + 3*3072
L_ML  = L_CN + 16
L_MB  = L_ML + 192
L_END = L_MB + 16

V_KOFF=1; V_T2E=2; V_T2O=3; V_LANE=4; V_M=5; V_L=6; V_S0=7; V_S1=8; V_T=9; V_U=10
V_P0L=11; V_P0H=12; V_P1L=13; V_P1H=14; V_ST=15
V_PA=16; V_TAG=17; V_A2=18; V_A3=19
V_PD=20
V_MLD=32
V_SCD=36; V_SCE=37
V_SCW=38; V_SCR=39; V_MLA=40; V_OWA=41; V_QA=42; V_SCG=43
V_HD=224
V_HA=228; V_MB=229; V_MBA=230
V_Q=44
V_ACC=56
V_A=80; V_B=104
V_TR=255
V_X=128
S_W=3
S_CUR=28; S_T1=36; S_T2=40; S_X=44; S_WS=48; S_OUT=52; S_P1=56
S_UOFF=60; S_CNT=61; S_TAG=62; S_E=63; S_PITCH=64
S_SOFF=76; S_SPIN=77; S_N=78; S_NC=79
S_NIB=80; S_R1=84; S_RB=87
S_D0=88; S_D1=89; S_D2=90; S_B1=91; S_B2=92; S_EVT=93; S_EID=94; S_PCUR=95
S_RET=26
S_CTP=32
S_CLM=34; S_G=35
S_MG=100; S_PF=101
S_SCO=14
S_LIM=15
S_SCO2=20
S_I=21

class Gen:
    def __init__(self, **kw):
        self.o = []
        self.cfg = dict(stamps=False, lds=81920+1024, kname=KNAME, pol="nt", spin=1<<20, NX=4,
                        headlim=6, outpol="", npre=3, waits=[5]*6, D=16, perm=0x57136420, r1perm=True, cstep=(0, 3), bar=None)
        self.cfg.update(kw)
        self.names = {}
    def A(self, s): self.o.append("  " + s)
    def L(self, s): self.o.append(s + ":")
    def C(self, s): self.o.append("  ; " + s)
    def trace(self):
        if not self.cfg.get("trace"): return
        self.A("s_memrealtime s[96:97]")
        self.A("s_waitcnt lgkmcnt(0)")
        self.A("s_mov_b32 m0, s22")
        self.A(f"v_writelane_b32 v{V_TR}, s96, m0")
        self.A("s_add_u32 s22, s22, 1")
    def stamp(self, name):
        if not self.cfg["stamps"]: return
        k = self.names.setdefault(name, len(self.names))
        self.A(f"s_memrealtime s[96:97]")
        self.A("s_waitcnt lgkmcnt(0)")
        self.A(f"v_writelane_b32 v{V_ST}, s96, {k}")

def build(**kw):
    g = Gen(**kw); A = g.A; L = g.L; C = g.C; cfg = g.cfg
    pol = cfg["pol"]; name = cfg["kname"]; o = g.o
    NX = cfg["NX"]; HL = cfg["headlim"]; WT = cfg["waits"]; D = cfg["D"]
    assert NX == 4 and D % 8 == 0 and D <= 32
    V_END = 232
    if cfg.get("trace"): V_END = 256
    TS = (128 - D)//4
    o.append(f"; @launch grid=(256,1,1) block=(256,1,1) lds={cfg['lds']}")
    if cfg.get("trace"): o.append(f"; trace {NX} {TS}")
    o.append('.amdgcn_target "amdgcn-amd-amdhsa--gfx950"')
    o.append(".text")
    o.append(f".globl {name}")
    o.append(".p2align 8")
    o.append(f".type {name},@function")
    o.append(f"{name}:")
    A("s_cmp_ge_u32 s2, 256")
    A("s_cbranch_scc1 L_end")
    A("s_load_dwordx16 s[4:19], s[0:1], 0")
    A("s_load_dwordx4 s[20:23], s[0:1], 64")
    A("s_load_dwordx2 s[24:25], s[0:1], 80")
    if cfg["stamps"] or cfg.get("diag_total"):
        A("s_memrealtime s[98:99]")
        A(f"v_mov_b32 v{V_ST}, 0")
    A(f"v_lshrrev_b32 v{V_T}, 6, v0")
    A(f"v_and_b32 v{V_LANE}, 63, v0")
    A(f"v_readfirstlane_b32 s{S_W}, v{V_T}")
    C("phase-1 tile role r1 (spreads the lighter roles over the pool groups): cb = r1>>1, kh = r1&1")
    if cfg["r1perm"]:
        A(f"s_lshr_b32 s65, s2, 4")
        A(f"s_add_u32 s66, s2, s65")
        A(f"s_and_b32 s66, s66, 15")
        A(f"s_lshl_b32 s66, s66, 4")
        A(f"s_or_b32 s{S_R1}, s66, s65")
    else:
        A(f"s_mov_b32 s{S_R1}, s2")
    A(f"s_lshr_b32 s65, s{S_R1}, 1")
    A(f"s_and_b32 s66, s{S_R1}, 1")
    A(f"s_cmp_lt_u32 s65, 96")
    A(f"s_movk_i32 s{S_PITCH}, 3072")
    A(f"s_cselect_b32 s{S_PITCH}, 12288, s{S_PITCH}")
    A(f"s_cselect_b32 s67, 0, 96")
    A(f"s_sub_u32 s67, s65, s67")
    A(f"s_lshl_b32 s67, s67, 7")
    A(f"s_mul_i32 s68, s66, 320")
    A(f"s_mul_i32 s68, s68, s{S_PITCH}")
    A(f"s_add_u32 s67, s67, s68")
    A(f"s_mul_i32 s69, s{S_PITCH}, 319")
    A(f"s_add_u32 s69, s69, 128")
    A(f"v_lshrrev_b32 v{V_T}, 3, v{V_LANE}")
    A(f"v_and_b32 v{V_U}, 7, v{V_LANE}")
    A(f"v_and_b32 v{V_S0}, 6, v{V_T}")
    A(f"v_xor_b32 v{V_S0}, v{V_S0}, v{V_U}")
    A(f"v_mul_lo_u32 v{V_PA}, s{S_PITCH}, v{V_T}")
    A(f"v_lshl_add_u32 v{V_PA}, v{V_S0}, 4, v{V_PA}")
    A(f"v_lshlrev_b32 v{V_A2}, 4, v{V_LANE}")
    A(f"v_lshlrev_b32 v{V_A3}, 2, v{V_LANE}")
    A(f"s_mul_i32 s70, s{S_W}, 1280")
    A(f"s_mul_i32 s{S_SOFF}, s{S_W}, 80")
    A(f"s_mul_i32 s{S_SOFF}, s{S_SOFF}, s{S_PITCH}")
    A(f"s_mul_i32 s72, s{S_W}, 10240")
    A(f"s_lshl_b32 s73, s{S_PITCH}, 3")
    A(f"s_mov_b32 s{S_X+2}, 5120")
    A(f"s_mov_b32 s{S_X+3}, 0x00020000")
    A(f"s_mov_b32 s{S_T1+3}, 0x00020000")
    A(f"s_cmp_lt_u32 s{S_R1}, 240")
    A(f"s_cselect_b32 s{S_T1+2}, s69, 0")
    A(f"s_cmp_lt_u32 s65, 96")
    A(f"s_cselect_b32 s{S_P1+2}, {WS_END}, 0")
    A("s_waitcnt lgkmcnt(0)")
    A(f"s_cselect_b32 s{S_T1}, s10, s16")
    A(f"s_cselect_b32 s{S_T1+1}, s11, s17")
    A(f"s_mov_b32 s{S_X}, s4")
    A(f"s_mov_b32 s{S_X+1}, s5")
    XR = V_X + 48
    A(f"buffer_load_dwordx4 v[{XR}:{XR+3}], v{V_A2}, s[{S_X}:{S_X+3}], s70 offen")
    A(f"buffer_load_dword v{XR+4}, v{V_A3}, s[{S_X}:{S_X+3}], s70 offen offset:1024")
    A(f"s_add_u32 s{S_T1}, s{S_T1}, s67")
    A(f"s_addc_u32 s{S_T1+1}, s{S_T1+1}, 0")
    A(f"s_mov_b32 m0, s72")
    A(f"s_load_dword s{S_E}, s[24:25], {WS_E}")
    for t in range(10):
        A(f"buffer_load_dwordx4 v{V_PA}, s[{S_T1}:{S_T1+3}], s{S_SOFF} offen {pol} lds")
        if t < 9:
            A(f"s_add_u32 m0, m0, 1024")
            A(f"s_add_u32 s{S_SOFF}, s{S_SOFF}, s73")
    C("attention pieces p_j = 256*j + wg cover units [U(p), U(p+1)), U(p) = (128p+1)/3")
    A(f"v_mul_u32_u24 v{V_KOFF}, 384, v{V_T}")
    A(f"v_lshl_add_u32 v{V_KOFF}, v{V_U}, 4, v{V_KOFF}")
    A(f"s_mov_b32 s{S_OUT}, s20")
    A(f"s_mov_b32 s{S_OUT+1}, s21")
    C("logical index: neighbours 2k, 2k+1 sit on dies x and x^5 under round-robin placement (speed only)")
    if cfg["perm"]:
        A(f"s_and_b32 s65, s2, 7")
        A(f"s_lshl_b32 s65, s65, 2")
        A(f"s_lshr_b32 s65, {cfg['perm']}, s65")
        A(f"s_and_b32 s65, s65, 7")
        A(f"s_andn2_b32 s{S_I}, s2, 7")
        A(f"s_or_b32 s{S_I}, s{S_I}, s65")
    else:
        A(f"s_mov_b32 s{S_I}, s2")
    def ufun(dst, padd):
        A(f"s_lshl_b32 s{dst}, s{S_I}, 7")
        A(f"s_add_u32 s{dst}, s{dst}, {128*padd + 1}")
        A(f"s_mul_hi_u32 s{dst}, s{dst}, 0xaaaaaaab")
        A(f"s_lshr_b32 s{dst}, s{dst}, 1")
    ufun(S_D0, 0); ufun(S_B1, 1); ufun(S_D1, 256); ufun(S_B2, 257); ufun(S_D2, 512)
    A(f"s_sub_u32 s{S_B1}, s{S_B1}, s{S_D0}")
    A(f"s_sub_u32 s{S_B2}, s{S_B2}, s{S_D1}")
    A(f"s_add_u32 s{S_B2}, s{S_B2}, s{S_B1}")
    A(f"s_sub_u32 s{S_D1}, s{S_D1}, s{S_B1}")
    A(f"s_sub_u32 s{S_D2}, s{S_D2}, s{S_B2}")
    A(f"s_mov_b32 s{S_CUR}, s6")
    A(f"s_mov_b32 s{S_CUR+1}, s7")
    A(f"s_mov_b32 s{S_CUR+2}, {NBKV}")
    A(f"s_mov_b32 s{S_CUR+3}, 0x00020000")
    A(f"s_mov_b32 s{S_N}, s{S_W}")
    A(f"s_add_u32 s{S_UOFF}, s{S_N}, s{S_D0}")
    A(f"s_mul_i32 s{S_UOFF}, s{S_UOFF}, 6144")
    A(f"s_mov_b32 s{S_WS}, s24")
    A(f"s_mov_b32 s{S_WS+1}, s25")
    A(f"s_mov_b32 s{S_WS+2}, {WS_END if not cfg['stamps'] else WS_DBG + 512*1024}")
    A(f"s_mov_b32 s{S_WS+3}, 0x00020000")
    A(f"s_mov_b32 s{S_P1}, s24")
    A(f"s_mov_b32 s{S_P1+1}, s25")
    A(f"s_mov_b32 s{S_P1+3}, 0x00020000")
    def ld(base, k):
        r = base + 4*k
        A(f"buffer_load_dwordx4 v[{r}:{r+3}], v{V_KOFF}, s[{S_CUR}:{S_CUR+3}], s{S_UOFF} offen offset:{3072*(k//3)+128*(k%3)} {pol}")
    def step_simple():
        A(f"s_add_u32 s{S_N}, s{S_N}, 4")
        A(f"s_add_u32 s{S_UOFF}, s{S_UOFF}, {4*6144}")
    def step_static(wrap):
        A(f"s_add_u32 s{S_N}, s{S_N}, 4")
        if wrap:
            A(f"s_cmp_ge_u32 s{S_N}, 128")
            A(f"s_cselect_b32 s{S_CUR}, s8, s{S_CUR}")
            A(f"s_cselect_b32 s{S_CUR+1}, s9, s{S_CUR+1}")
            A(f"s_and_b32 s{S_N}, s{S_N}, 127")
        A(f"s_cmp_ge_u32 s{S_N}, s{S_B1}")
        A(f"s_cselect_b32 s65, s{S_D1}, s{S_D0}")
        A(f"s_cmp_ge_u32 s{S_N}, s{S_B2}")
        A(f"s_cselect_b32 s65, s{S_D2}, s65")
        A(f"s_add_u32 s65, s65, s{S_N}")
        A(f"s_mul_i32 s{S_UOFF}, s65, 6144")
    g.stamp("issued T1")
    C("---- layernorm of batch w ----")
    A("s_waitcnt vmcnt(10)")
    g.stamp("x landed")
    E = XR + 8
    for k in range(5):
        A(f"v_lshlrev_b32 v{E+2*k}, 16, v{XR+k}")
        A(f"v_and_b32 v{E+2*k+1}, 0xffff0000, v{XR+k}")
    def allreduce(v, t, op, dpp, swaps):
        for ctl in dpp:
            A("s_nop 1")
            A(f"{op}_dpp v{v}, v{v}, v{v} {ctl} row_mask:0xf bank_mask:0xf")
        for sw in swaps:
            A(f"v_mov_b32 v{t}, v{v}")
            A("s_nop 1")
            A(f"{sw} v{v}, v{t}")
            A("s_nop 0")
            A(f"{op} v{v}, v{v}, v{t}")
    DPP4 = ("quad_perm:[1,0,3,2]", "quad_perm:[2,3,0,1]", "row_half_mirror", "row_mirror")
    SW2 = ("v_permlane16_swap_b32", "v_permlane32_swap_b32")
    S = XR + 20; T = XR + 21; MU = XR + 22; DD = XR + 24
    A(f"v_add_f32 v{S}, v{E}, v{E+1}")
    for k in range(2, 10):
        A(f"v_add_f32 v{S}, v{S}, v{E+k}")
    allreduce(S, T, "v_add_f32", DPP4, SW2)
    A(f"v_mul_f32 v{MU}, {f32(1/640.)}, v{S}")
    for k in range(10):
        A(f"v_sub_f32 v{DD+k}, v{E+k}, v{MU}")
    A(f"v_mul_f32 v{S}, v{DD}, v{DD}")
    for k in range(1, 10):
        A(f"v_fmac_f32 v{S}, v{DD+k}, v{DD+k}")
    allreduce(S, T, "v_add_f32", DPP4, SW2)
    ld(V_A, 0); ld(V_A, 1); ld(V_A, 2)
    A(f"v_mul_f32 v{S}, {f32(1/640.)}, v{S}")
    A(f"v_cvt_pk_bf16_f32 v{T}, v{MU}, v{S}")
    A(f"v_lshlrev_b32 v{MU}, 16, v{T}")
    A(f"v_and_b32 v{S}, 0xffff0000, v{T}")
    A(f"v_add_f32 v{S}, {f32(1e-5)}, v{S}")
    A(f"v_cvt_pk_bf16_f32 v{T}, v{S}, v{S}")
    A(f"v_and_b32 v{S}, 0xffff0000, v{T}")
    A(f"v_sqrt_f32 v{S}, v{S}")
    for k in range(10):
        A(f"v_sub_f32 v{DD+k}, v{E+k}, v{MU}")
    A(f"v_cvt_pk_bf16_f32 v{T}, v{S}, v{S}")
    A(f"v_and_b32 v{S}, 0xffff0000, v{T}")
    A(f"v_rcp_f32 v{T}, v{S}")
    for k in range(5):
        A(f"v_cvt_pk_bf16_f32 v{XR+k}, v{DD+2*k}, v{DD+2*k+1}")
    for k in range(5):
        A(f"v_lshlrev_b32 v{DD+2*k}, 16, v{XR+k}")
        A(f"v_and_b32 v{DD+2*k+1}, 0xffff0000, v{XR+k}")
    C("quotient with one Newton correction: q = d*r; q += (d - q*s)*r")
    for k in range(10):
        A(f"v_mul_f32 v{E+k}, v{DD+k}, v{T}")
    for k in range(10):
        A(f"v_fma_f32 v{DD+k}, -v{E+k}, v{S}, v{DD+k}")
    for k in range(10):
        A(f"v_fmac_f32 v{E+k}, v{DD+k}, v{T}")
    for k in range(5):
        A(f"v_cvt_pk_bf16_f32 v{XR+k}, v{E+2*k}, v{E+2*k+1}")
    A(f"s_mul_i32 s70, s{S_W}, {XNP}")
    A(f"v_add_u32 v{V_A2}, s70, v{V_A2}")
    A(f"v_add_u32 v{V_A3}, s70, v{V_A3}")
    A(f"ds_write_b128 v{V_A2}, v[{XR}:{XR+3}] offset:{L_XN}")
    A(f"ds_write_b32 v{V_A3}, v{XR+4} offset:{L_XN+1024}")
    ld(V_A, 3); ld(V_A, 4); ld(V_A, 5)
    step_simple()
    NP = cfg["npre"]
    for k in range(NP): ld(V_B, k)
    C("---- phase 1 projection: D[col][batch] ----")
    A(f"v_lshrrev_b32 v{V_T}, 4, v{V_LANE}")
    A(f"v_bfe_u32 v{V_U}, v{V_LANE}, 2, 2")
    A(f"v_lshl_add_u32 v{V_S0}, v{V_T}, 2, v{V_U}")
    A(f"v_bfe_u32 v{V_S1}, v{V_S0}, 1, 2")
    A(f"v_xor_b32 v{V_S1}, s{S_W}, v{V_S1}")
    A(f"v_lshlrev_b32 v{V_S1}, 5, v{V_S1}")
    A(f"v_lshl_add_u32 v{V_S1}, v{V_S0}, 7, v{V_S1}")
    A(f"v_and_b32 v{V_U}, 3, v{V_LANE}")
    A(f"v_lshl_add_u32 v{V_A2}, v{V_U}, 3, v{V_S1}")
    A(f"v_mul_u32_u24 v{V_A3}, {XNP}, v{V_U}")
    A(f"v_lshl_add_u32 v{V_A3}, v{V_T}, 3, v{V_A3}")
    A(f"s_mul_i32 s70, s66, 640")
    A(f"s_add_u32 s70, s70, {L_XN}")
    A(f"v_add_u32 v{V_A3}, s70, v{V_A3}")
    C("publish address: QX + tile*1024 + w*256 + batch*64 + g*16")
    A(f"v_lshlrev_b32 v{V_HA}, 6, v{V_U}")
    A(f"v_lshl_add_u32 v{V_HA}, v{V_T}, 4, v{V_HA}")
    A(f"s_lshl_b32 s70, s{S_R1}, 10")
    A(f"s_lshl_b32 s71, s{S_W}, 8")
    A(f"s_add_u32 s70, s70, s71")
    A(f"s_add_u32 s70, s70, {WS_QX}")
    A(f"v_add_u32 v{V_HA}, s70, v{V_HA}")
    A(f"s_waitcnt vmcnt({6+NP}) lgkmcnt(0)")
    A(f"s_add_u32 s{S_TAG}, s{S_E}, 0x11111111")
    for k in range(4):
        A(f"s_bfe_u32 s{S_NIB+k}, s{S_TAG}, {0x40000 + 4*k}")
    A("s_barrier")
    g.stamp("T1 landed")
    WA = V_X; XB = V_X + 40
    for s in range(10):
        A(f"ds_read_b64_tr_b16 v[{WA+4*s}:{WA+4*s+1}], v{V_A2} offset:{L_T+4096*s}")
        A(f"ds_read_b64_tr_b16 v[{WA+4*s+2}:{WA+4*s+3}], v{V_A2} offset:{L_T+4096*s+2048}")
        A(f"ds_read2_b64 v[{XB+4*s}:{XB+4*s+3}], v{V_A3} offset0:{8*s} offset1:{8*s+4}")
        if s >= 4:
            A(f"s_waitcnt lgkmcnt(12)")
            m = s - 4
            A(f"v_mfma_f32_16x16x32_bf16 v[{V_HD}:{V_HD+3}], v[{WA+4*m}:{WA+4*m+3}], v[{XB+4*m}:{XB+4*m+3}], " + ("0" if m == 0 else f"v[{V_HD}:{V_HD+3}]"))
    for m in range(6, 10):
        A(f"s_waitcnt lgkmcnt({3*(9-m)})")
        A(f"v_mfma_f32_16x16x32_bf16 v[{V_HD}:{V_HD+3}], v[{WA+4*m}:{WA+4*m+3}], v[{XB+4*m}:{XB+4*m+3}], v[{V_HD}:{V_HD+3}]")
    def tag4(r):
        for k in range(4):
            A(f"v_and_or_b32 v{r+k}, v{r+k}, -16, s{S_NIB+k}")
    def chk4(r, first):
        for k in range(4):
            if first and k == 0: A(f"v_xor_b32 v{V_S0}, s{S_NIB}, v{r}")
            else: A(f"v_bitop3_b32 v{V_S0}, v{r+k}, s{S_NIB+k}, v{V_S0} bitop3:0xbe")
    def chkend():
        A(f"v_and_b32 v{V_S0}, 15, v{V_S0}")
        A(f"v_cmp_ne_u32 vcc, 0, v{V_S0}")
    def strip4(r):
        for k in range(4):
            A(f"v_and_b32 v{r+k}, -16, v{r+k}")
    def pub1():
        A("s_mov_b32 exec_lo, 0x000f000f")
        A("s_mov_b32 exec_hi, 0x000f000f")
        A(f"buffer_store_dwordx4 v[{V_HD}:{V_HD+3}], v{V_HA}, s[{S_P1}:{S_P1+3}], 0 offen sc1")
        A("s_mov_b64 exec, -1")
    A(f"v_mov_b32 v{V_TAG}, s{S_TAG}")
    A("s_nop 6")
    tag4(V_HD)
    pub1()
    g.stamp("published q part")
    C("---- extra K units while q is on its way; scalar set-up rides in the gaps ----")
    side = []
    B = side.append
    B(f"s_add_u32 s65, s{S_I}, 512")
    B(f"s_mul_i32 s65, s65, 43691")
    B(f"s_lshr_b32 s65, s65, 18")
    B(f"s_mul_i32 s66, s65, 6")
    B(f"s_max_u32 s{S_PF}, s66, 512")
    B(f"s_add_u32 s66, s66, 6")
    B(f"s_sub_u32 s{S_G}, s66, s{S_PF}")
    B(f"s_mul_i32 s{S_LIM}, s{S_G}, {D//4}")
    B([f"s_cmp_eq_u32 s{S_G}, 6", f"s_movk_i32 s{S_MG}, 16384", f"s_cselect_b32 s{S_MG}, 10923, s{S_MG}"])
    B(f"s_sub_u32 s65, s65, 85")
    B(f"s_lshl_b32 s65, s65, 8")
    B(f"s_add_u32 s74, s65, {WS_CT}")
    B([f"s_add_u32 s{S_CTP}, s24, s74", f"s_addc_u32 s{S_CTP+1}, s25, 0"])
    B(f"s_sub_u32 s{S_PF}, s{S_PF}, 512")
    B(f"v_mov_b32 v{V_MBA}, {L_MB}")
    B(f"s_mul_i32 s{S_RB}, s2, 52429")
    B(f"s_lshr_b32 s{S_RB}, s{S_RB}, 18")
    B(f"s_mul_i32 s66, s{S_RB}, 5")
    B(f"s_sub_u32 s67, s2, s66")
    B(f"s_lshl_b32 s67, s67, 8")
    B(f"s_and_b32 s66, s{S_RB}, 31")
    B(f"s_mul_i32 s66, s66, {192*1280}")
    B(f"s_add_u32 s66, s66, s67")
    B([f"s_cmp_lt_u32 s{S_RB}, 32", f"s_cselect_b32 s{S_T2}, s12, s18", f"s_cselect_b32 s{S_T2+1}, s13, s19"])
    B([f"s_cmp_lt_u32 s2, 200", f"s_cselect_b32 s{S_T2+2}, {191*1280+256}, 0", f"s_cselect_b32 s66, s66, 0"])
    B([f"s_add_u32 s{S_T2}, s{S_T2}, s66", f"s_addc_u32 s{S_T2+1}, s{S_T2+1}, 0", f"s_mov_b32 s{S_T2+3}, 0x00020000"])
    B(f"v_lshrrev_b32 v{V_T}, 4, v{V_LANE}")
    B(f"v_bfe_u32 v{V_U}, v{V_LANE}, 1, 3")
    B(f"v_xor_b32 v{V_U}, v{V_U}, v{V_T}")
    B(f"v_mul_u32_u24 v{V_T2E}, 1280, v{V_T}")
    B(f"v_lshl_add_u32 v{V_T2E}, v{V_U}, 5, v{V_T2E}")
    B(f"v_and_b32 v{V_U}, 1, v{V_LANE}")
    B(f"v_lshl_add_u32 v{V_T2E}, v{V_U}, 4, v{V_T2E}")
    B(f"v_xor_b32 v{V_T2O}, 128, v{V_T2E}")
    for j in range(3):
        B(f"s_add_u32 s65, s{S_I}, {256*j}")
        B(f"s_mul_i32 s65, s65, 43691")
        B(f"s_lshr_b32 s65, s65, 18")
        B(f"s_and_b32 s66, s65, 31")
        B(f"s_lshr_b32 s65, s65, 5")
        B(f"s_mul_i32 s66, s66, {6*1024}")
        B(f"s_lshl_b32 s65, s65, 6")
        B(f"s_add_u32 s65, s65, s66")
        B(f"s_add_u32 s65, s65, s71")
        B(f"s_add_u32 s{67+j}, s65, {WS_QX}")
    B(f"v_lshrrev_b32 v{V_T}, 3, v{V_LANE}")
    B(f"v_and_b32 v{V_U}, 7, v{V_LANE}")
    B(f"v_lshlrev_b32 v{V_SCG}, 2, v{V_T}")
    B(f"s_lshl_b32 s65, s{S_W}, 5")
    B(f"s_add_u32 s65, s65, {L_SC}")
    B(f"v_add_u32 v{V_SCR}, s65, v{V_SCG}")
    B(f"v_lshrrev_b32 v{V_S0}, 2, v{V_U}")
    B(f"v_lshl_add_u32 v{V_SCW}, v{V_S0}, 1, v{V_SCR}")
    B(f"v_lshlrev_b32 v{V_QA}, 4, v{V_U}")
    B(f"v_add_u32 v{V_QA}, {L_QB}, v{V_QA}")
    B(f"v_lshl_add_u32 v{V_OWA}, v{V_U}, 3, v{V_T}")
    B(f"s_mul_i32 s65, s{S_W}, 768")
    B(f"s_add_u32 s65, s65, {L_OW}")
    B(f"v_lshl_add_u32 v{V_OWA}, v{V_OWA}, 2, s65")
    B(f"v_and_b32 v{V_S0}, 31, v{V_LANE}")
    B(f"v_min_u32 v{V_S0}, 23, v{V_S0}")
    B(f"v_lshlrev_b32 v{V_MLA}, 4, v{V_S0}")
    B(f"v_min_u32 v{V_T}, 2, v{V_T}")
    B(f"v_lshrrev_b32 v{V_S0}, 2, v{V_U}")
    B(f"v_lshl_add_u32 v{V_PA}, v{V_T}, 1, v{V_S0}")
    B(f"v_lshlrev_b32 v{V_PA}, 10, v{V_PA}")
    B(f"v_mul_u32_u24 v{V_S0}, 7, v{V_S0}")
    B(f"v_xor_b32 v{V_S0}, v{V_S0}, v{V_U}")
    B(f"v_lshl_add_u32 v{V_PA}, v{V_S0}, 4, v{V_PA}")
    B(f"v_lshlrev_b32 v{V_A2}, 7, v{V_T}")
    B(f"v_lshl_add_u32 v{V_A2}, v{V_S0}, 3, v{V_A2}")
    B(f"s_lshl_b32 s65, s{S_W}, 5")
    B(f"v_add_u32 v{V_A2}, s65, v{V_A2}")
    B([f"s_cmp_ge_u32 s{S_R1}, 192", f"s_cselect_b32 s{S_P1+2}, {WS_END}, 0"])
    B([f"s_cmp_ge_u32 s{S_R1}, 240", f"s_cselect_b32 s{S_P1+2}, 0, s{S_P1+2}"])
    B(f"s_mov_b32 s{S_SPIN}, {cfg['spin']}")
    for k in range(24):
        B(f"v_mov_b32 v{V_ACC+k}, 0")
    B(f"v_mov_b32 v{V_M}, 0xff7f0000")
    B(f"v_mov_b32 v{V_L}, 0")
    B(f"s_mov_b32 s{S_EID}, 0")
    B(f"s_mov_b32 s{S_EVT}, s{S_B1}")
    B(f"s_mov_b32 s{S_PCUR}, s{S_I}")
    B(f"s_add_u32 s{S_NC}, s{S_W}, {4*(NX+2)}")
    chunks = []
    i = 0
    while i < len(side):
        it = side[i]
        if isinstance(it, str) and it.startswith("s_cmp"):
            n = 3 if it.startswith("s_cmp") else 2
            chunks.append(side[i:i+n]); i += n
        elif isinstance(it, str):
            chunks.append([it]); i += 1
        else:
            chunks.append(it); i += 1
    seq = [(V_B, k) for k in range(NP, 6)] + [(V_X + 24*x, k) for x in range(NX-1) for k in range(6)]
    per = -(-len(chunks) // max(len(seq) - 2, 1))
    ci = 0
    if NP == 6: step_simple()
    for base, k in seq:
        if HL: A(f"s_waitcnt vmcnt({HL-1})")
        ld(base, k)
        for ch in chunks[ci:ci+per]:
            for s_ in ch: A(s_)
        ci += per
        if k == 5: step_simple()
    assert ci >= len(chunks)
    C("the group's first member clears the pool counter (wave 3 also hands on the entry that licenses its use)")
    A(f"s_cmp_lg_u32 s{S_I}, s{S_PF}")
    A("s_cbranch_scc1 L_noclr")
    A(f"s_cmp_lg_u32 s{S_W}, 3")
    A("s_cbranch_scc1 L_noclr")
    A("s_mov_b64 exec, 1")
    A(f"buffer_store_dword v{V_L}, v{V_L}, s[{S_WS}:{S_WS+3}], s74 offen sc1")
    A("s_mov_b64 exec, -1")
    L("L_noclr")
    for j in range(3):
        A(f"buffer_load_dwordx4 v[{V_PD+4*j}:{V_PD+4*j+3}], v{V_PA}, s[{S_WS}:{S_WS+3}], s{67+j} offen sc1")
    for k in range(6):
        if HL: A(f"s_waitcnt vmcnt({HL-1+3})")
        ld(V_X + 24*(NX-1), k)
    step_simple()
    A("s_waitcnt vmcnt(6)")
    g.stamp("q poll 1 back")
    L("L_qchk")
    for j in range(3): chk4(V_PD+4*j, j == 0)
    chkend()
    A("s_nop 1")
    A("s_cbranch_vccz L_qok")
    A(f"s_sub_u32 s{S_SPIN}, s{S_SPIN}, 1")
    A("s_cbranch_scc1 L_end")
    for j in range(3):
        A(f"buffer_load_dwordx4 v[{V_PD+4*j}:{V_PD+4*j+3}], v{V_PA}, s[{S_WS}:{S_WS+3}], s{67+j} offen sc1")
    A("s_waitcnt vmcnt(0)")
    A("s_branch L_qchk")
    L("L_qok")
    for j in range(3): strip4(V_PD+4*j)
    for k in range(12):
        A(f"v_add_f32_dpp v{V_PD+k}, v{V_PD+k}, v{V_PD+k} row_half_mirror row_mask:0xf bank_mask:0xf")
    for j in range(3):
        A(f"v_cvt_pk_bf16_f32 v{V_PD+4*j}, v{V_PD+4*j}, v{V_PD+4*j+1}")
        A(f"v_cvt_pk_bf16_f32 v{V_PD+4*j+1}, v{V_PD+4*j+2}, v{V_PD+4*j+3}")
    for j in range(3):
        A(f"ds_write_b64 v{V_A2}, v[{V_PD+4*j}:{V_PD+4*j+1}] offset:{L_QB+384*j}")
    A(f"v_mov_b32 v{V_T}, {L_CN}")
    A(f"ds_write_b128 v{V_T}, v[{V_ACC}:{V_ACC+3}]")
    A("s_waitcnt lgkmcnt(0)")
    A("s_barrier")
    for j in range(3):
        A(f"ds_read_b128 v[{V_Q+4*j}:{V_Q+4*j+3}], v{V_QA} offset:{128*j}")
    A("s_waitcnt lgkmcnt(0)")
    g.stamp("q ready")

    def kunit(base, waits, issue):
        A(f"v_mov_b32 v{V_S0}, 0")
        A(f"v_mov_b32 v{V_S1}, 0")
        for k in range(6):
            if waits[k] is not None: A(f"s_waitcnt vmcnt({waits[k]})")
            if issue is not None: ld(issue, k)
            sv = V_S0 if k < 3 else V_S1
            for e in range(4):
                A(f"v_dot2c_f32_bf16 v{sv}, v{base+4*k+e}, v{V_Q+4*(k%3)+e}")
        A(f"v_add_f32_dpp v{V_T}, v{V_S0}, v{V_S0} row_half_mirror row_mask:0xf bank_mask:0x5")
        A("s_nop 1")
        A(f"v_add_f32_dpp v{V_T}, v{V_S1}, v{V_S1} row_half_mirror row_mask:0xf bank_mask:0xa")
        A("s_nop 1")
        A(f"v_add_f32_dpp v{V_T}, v{V_T}, v{V_T} quad_perm:[1,0,3,2] row_mask:0xf bank_mask:0xf")
        A("s_nop 1")
        A(f"v_add_f32_dpp v{V_T}, v{V_T}, v{V_T} quad_perm:[2,3,0,1] row_mask:0xf bank_mask:0xf")
        A(f"v_cvt_pk_bf16_f32 v{V_T}, v{V_T}, v{V_T}")
        A(f"v_and_b32 v{V_T}, 0xffff0000, v{V_T}")
        A(f"v_mul_f32 v{V_T}, {f32(192**-0.5)}, v{V_T}")
        A(f"v_cvt_pk_bf16_f32 v{V_T}, v{V_T}, v{V_T}")
        A(f"v_and_b32 v{V_T}, 0xffff0000, v{V_T}")
        A(f"v_max_f32 v{V_S1}, v{V_M}, v{V_T}")
        A(f"ds_write_b16_d16_hi v{V_SCW}, v{V_T}")
        A(f"v_sub_f32 v{V_S0}, v{V_M}, v{V_S1}")
        A(f"v_sub_f32 v{V_U}, v{V_T}, v{V_S1}")
        A(f"v_mul_f32 v{V_S0}, {f32(LOG2E)}, v{V_S0}")
        A(f"v_mul_f32 v{V_U}, {f32(LOG2E)}, v{V_U}")
        A(f"v_exp_f32 v{V_S0}, v{V_S0}")
        A(f"v_exp_f32 v{V_U}, v{V_U}")
        A(f"v_mov_b32 v{V_M}, v{V_S1}")
        A(f"v_add_u32 v{V_SCW}, 128, v{V_SCW}")
        A(f"v_fma_f32 v{V_L}, v{V_L}, v{V_S0}, v{V_U}")
    def timed_call(handler):
        if cfg.get("evtime"):
            A("s_memrealtime s[72:73]")
            A("s_waitcnt lgkmcnt(0)")
        A(f"s_call_b64 s[{S_RET}:{S_RET+1}], {handler}")
        if cfg.get("evtime"):
            A("s_memrealtime s[96:97]")
            A("s_waitcnt lgkmcnt(0)")
            A("s_sub_u32 s96, s96, s72")
            A("s_mov_b32 m0, s23")
            A(f"v_writelane_b32 v{V_ST}, s96, m0")
            A("s_add_u32 s23, s23, 1")
    def event(tag, handler):
        A(f"s_cmp_ge_u32 s{S_NC}, s{S_EVT}")
        A(f"s_cbranch_scc0 L_ne_{tag}")
        timed_call(handler)
        L(f"L_ne_{tag}")
        A(f"s_add_u32 s{S_NC}, s{S_NC}, 4")

    C("---- K: catch up, then the steady loop ----")
    kunit(V_A, [None]*6, None)
    for k in range(6): ld(V_A, k)
    kunit(V_B, [None]*6, None)
    for x in range(NX-1):
        kunit(V_X + 24*x, [None]*6, None)
    kunit(V_X + 24*(NX-1), [11, 10, 9, 8, 7, 6], None)
    g.stamp("extras done")
    if cfg.get("evtime"): A("s_mov_b32 s23, 40")
    if cfg.get("trace"):
        A(f"v_mov_b32 v{V_TR}, 0")
        A("s_mov_b32 s22, 0")
    g.trace()
    A(f"s_mov_b32 s{S_CNT}, {(32 - NX - 2)//2}")
    L("L_kloop")
    if cfg.get("bar") in ("all", "k"): A("s_barrier")
    step_static(False)
    event("ka", "H_K")
    kunit(V_A, WT, V_B)
    step_static(True)
    event("kb", "H_K")
    kunit(V_B, WT, V_A)
    g.trace()
    A(f"s_sub_u32 s{S_CNT}, s{S_CNT}, 1")
    A(f"s_cmp_lg_u32 s{S_CNT}, 0")
    A("s_cbranch_scc1 L_kloop")
    g.stamp("K done")
    timed_call("H_KS")
    A(f"s_mov_b32 s{S_PCUR}, s{S_I}")
    A(f"s_mov_b32 s{S_EID}, -1")
    A(f"s_mov_b32 s{S_EVT}, 8")
    A(f"s_mov_b32 s{S_NC}, s{S_W}")
    A("s_barrier")
    A(f"s_cmp_lg_u32 s{S_W}, 3")
    A("s_cbranch_scc1 L_nosc")
    A(f"v_min_u32 v{V_T}, {D*2 - 1}, v{V_LANE}")
    A(f"v_lshlrev_b32 v{V_T}, 4, v{V_T}")
    A(f"ds_read_b128 v[{V_PD}:{V_PD+3}], v{V_T} offset:{L_SC + (128-D)*32}")
    A(f"s_mul_i32 s70, s{S_I}, {D*32}")
    A(f"s_add_u32 s70, s70, {WS_SC}")
    A("s_waitcnt lgkmcnt(0)")
    A(f"buffer_store_dwordx4 v[{V_PD}:{V_PD+3}], v{V_T}, s[{S_WS}:{S_WS+3}], s70 offen sc1")
    L("L_nosc")
    timed_call("H_VS")

    def pprep(sc):
        A(f"v_lshlrev_b32 v{V_S0}, 16, v{sc}")
        A(f"v_and_b32 v{V_S1}, 0xffff0000, v{sc}")
        A(f"v_sub_f32 v{V_S0}, v{V_S0}, v{V_M}")
        A(f"v_sub_f32 v{V_S1}, v{V_S1}, v{V_M}")
        A(f"v_mul_f32 v{V_S0}, {f32(LOG2E)}, v{V_S0}")
        A(f"v_mul_f32 v{V_S1}, {f32(LOG2E)}, v{V_S1}")
        A(f"v_exp_f32 v{V_S0}, v{V_S0}")
        A(f"v_exp_f32 v{V_S1}, v{V_S1}")
        A(f"v_mul_f32 v{V_S0}, v{V_S0}, v{V_L}")
        A(f"v_mul_f32 v{V_S1}, v{V_S1}, v{V_L}")
        A(f"v_cvt_pk_bf16_f32 v{V_T}, v{V_S0}, v{V_S1}")
        A(f"v_and_b32 v{V_P0L}, 0xffff, v{V_T}")
        A(f"v_lshlrev_b32 v{V_P0H}, 16, v{V_T}")
        A(f"v_lshrrev_b32 v{V_P1L}, 16, v{V_T}")
        A(f"v_and_b32 v{V_P1H}, 0xffff0000, v{V_T}")
    def plds(sc):
        A(f"ds_read_b32 v{sc}, v{V_SCR}")
        A(f"v_add_u32 v{V_SCR}, 128, v{V_SCR}")
    def t2ld(t):
        if t == 0:
            A(f"s_mul_i32 s74, s{S_W}, {48*256}")
            A(f"s_add_u32 m0, s74, {L_T}")
            A(f"s_mul_i32 s{S_SOFF}, s{S_W}, {48*1280}")
        else:
            A(f"s_add_u32 m0, s74, {L_T + 1024*t}")
            A(f"s_add_u32 s{S_SOFF}, s{S_SOFF}, {4*1280}")
        A(f"buffer_load_dwordx4 v{V_T2O if t & 1 else V_T2E}, s[{S_T2}:{S_T2+3}], s{S_SOFF} offen {pol} lds")
    def vdots(base, k):
        pl, ph = (V_P0L, V_P0H) if k < 3 else (V_P1L, V_P1H)
        for e in range(4):
            a = V_ACC + 8*(k % 3) + 2*e
            A(f"v_dot2c_f32_bf16 v{a}, v{base+4*k+e}, v{pl}")
            A(f"v_dot2c_f32_bf16 v{a+1}, v{base+4*k+e}, v{ph}")
    def vunit(base, waits, issue, first):
        for k in range(6):
            A(f"s_waitcnt vmcnt({waits[k]})")
            ld(issue, k)
            if k == 0: first()
            vdots(base, k)
    def sprep(sc):
        A("s_waitcnt lgkmcnt(0)")
        pprep(sc)
    C("---- V: steady loop ----")
    A(f"s_mov_b32 s{S_CNT}, {(TS-2)//2}")
    L("L_vloop")
    if cfg.get("bar") in ("all", "v"): A("s_barrier")
    plds(V_SCD)
    step_static(False)
    event("va", "H_V")
    vunit(V_A, WT, V_B, lambda: sprep(V_SCD))
    plds(V_SCD)
    step_static(False)
    event("vb", "H_V")
    vunit(V_B, WT, V_A, lambda: sprep(V_SCD))
    g.trace()
    A(f"s_sub_u32 s{S_CNT}, s{S_CNT}, 1")
    A(f"s_cmp_lg_u32 s{S_CNT}, 0")
    A("s_cbranch_scc1 L_vloop")
    g.stamp("V loop done")
    CS0, CS1 = cfg["cstep"]
    def pool_steps(tag, slot, k):
        if k == CS0:
            A(f"s_cmp_lg_u32 s{S_W}, 0")
            A(f"s_cbranch_scc1 L_p0{tag}")
            A(f"s_mov_b32 s{S_CLM}, 1")
            A(f"s_atomic_add s{S_CLM}, s[{S_CTP}:{S_CTP+1}], 0 glc")
            L(f"L_p0{tag}")
        if k == CS1:
            A(f"s_cmp_lg_u32 s{S_W}, 0")
            A(f"s_cbranch_scc1 L_p1{tag}")
            A("s_waitcnt lgkmcnt(0)")
            A(f"v_mov_b32 v{V_MB}, s{S_CLM}")
            A(f"ds_write_b32 v{V_MBA}, v{V_MB} offset:{4*slot}")
            A("s_waitcnt lgkmcnt(0)")
            L(f"L_p1{tag}")
            A("s_barrier")
            A(f"ds_read_b32 v{V_MB}, v{V_MBA} offset:{4*slot}")
    plds(V_SCD)
    step_static(False)
    event("vc", "H_V")
    plds(V_SCE)
    for k in range(6):
        A(f"s_waitcnt vmcnt({WT[k]})")
        ld(V_B, k)
        if k == 0: sprep(V_SCD)
        vdots(V_A, k)
        pool_steps("s", 0, k)
    A("s_branch L_db")
    C("---- V: rounds claimed from the group's pool ----")
    SCV = {"a": V_SCD, "b": V_SCE}
    for tag, ntag, cur, nxt in (("a", "b", V_A, V_B), ("b", "a", V_B, V_A)):
        L(f"L_d{tag}")
        A("s_waitcnt lgkmcnt(0)")
        A(f"v_readfirstlane_b32 s67, v{V_MB}")
        g.trace()
        A("s_nop 1")
        A(f"s_cmp_ge_u32 s67, s{S_LIM}")
        A(f"s_cbranch_scc1 L_tail{tag}")
        A(f"s_mul_i32 s65, s67, s{S_MG}")
        A(f"s_lshr_b32 s65, s65, 16")
        A(f"s_mul_i32 s66, s65, s{S_G}")
        A(f"s_sub_u32 s66, s67, s66")
        A(f"s_lshl_b32 s65, s65, 2")
        A(f"s_add_u32 s65, s65, s{S_W}")
        A(f"s_add_u32 s66, s66, s{S_PF}")
        A(f"s_mul_i32 s67, s66, {D}")
        A(f"s_add_u32 s67, s67, s65")
        A(f"s_lshl_b32 s67, s67, 5")
        A(f"s_add_u32 s67, s67, {WS_SC}")
        A(f"buffer_load_dword v{SCV[ntag]}, v{V_SCG}, s[{S_WS}:{S_WS+3}], s67 offen sc1")
        A(f"s_lshl_b32 s66, s66, 7")
        A(f"s_add_u32 s66, s66, {128*513 + 1}")
        A(f"s_mul_hi_u32 s66, s66, 0xaaaaaaab")
        A(f"s_lshr_b32 s66, s66, 1")
        A(f"s_add_u32 s66, s66, s65")
        A(f"s_sub_u32 s66, s66, {D}")
        A(f"s_mul_i32 s{S_UOFF}, s66, 6144")
        for k in range(6):
            A(f"s_waitcnt vmcnt(6)")
            ld(nxt, k)
            if k == 0: pprep(SCV[tag])
            vdots(cur, k)
            pool_steps(tag, 0 if tag == "a" else 1, k)
    A("s_branch L_da")
    for tag, cur in (("a", V_A), ("b", V_B)):
        L(f"L_tail{tag}")
        g.stamp("pool empty")
        pub1()
        for k in range(6):
            A(f"s_waitcnt vmcnt({6 + k})")
            t2ld(2*k); t2ld(2*k+1)
            if k == 0: pprep(SCV[tag])
            vdots(cur, k)
        if tag == "a": A("s_branch L_tail")
    L("L_tail")
    g.stamp("last unit done")
    g.trace()
    def wave_reduce():
        for j in range(3):
            for e in range(4):
                a = V_ACC + 8*j + e
                A(f"v_permlane32_swap_b32 v{a}, v{a+4}")
        for j in range(3):
            for e in range(4):
                a = V_ACC + 8*j + e
                A(f"v_add_f32 v{a}, v{a}, v{a+4}")
        for j in range(3):
            for e in range(2):
                a = V_ACC + 8*j + e
                A(f"v_permlane16_swap_b32 v{a}, v{a+2}")
        for j in range(3):
            for e in range(2):
                a = V_ACC + 8*j + e
                A(f"v_add_f32 v{a}, v{a}, v{a+2}")
        for j in range(3):
            a = V_ACC + 8*j
            A(f"v_add_f32_dpp v{a+2}, v{a}, v{a} row_ror:8 row_mask:0xf bank_mask:0x3")
            A(f"v_add_f32_dpp v{a+2}, v{a+1}, v{a+1} row_ror:8 row_mask:0xf bank_mask:0xc")
        for j in range(3):
            A(f"ds_write_b32 v{V_OWA}, v{V_ACC+8*j+2} offset:{256*j}")
    def publish_record(R):
        for w in range(4):
            A(f"ds_read_b128 v[{R+4*w}:{R+4*w+3}], v{V_A2} offset:{768*w}")
        A("s_waitcnt lgkmcnt(2)")
        for k in range(4):
            A(f"v_add_f32 v{R+k}, v{R+k}, v{R+4+k}")
        A("s_waitcnt lgkmcnt(0)")
        for k in range(4):
            A(f"v_add_f32 v{R+8+k}, v{R+8+k}, v{R+12+k}")
        for k in range(4):
            A(f"v_add_f32 v{R+k}, v{R+k}, v{R+8+k}")
        tag4(R)
        A("s_mov_b32 exec_hi, 0x0000ffff")
        A(f"buffer_store_dwordx4 v[{R}:{R+3}], v{V_PA}, s[{S_WS}:{S_WS+3}], s70 offen sc1")
        A("s_mov_b32 exec_hi, -1")
    A("s_nop 2")
    wave_reduce()
    A(f"v_min_u32 v{V_T}, 47, v{V_LANE}")
    A(f"v_lshlrev_b32 v{V_PA}, 4, v{V_T}")
    A(f"s_mul_i32 s66, s{S_W}, 3072")
    A(f"s_add_u32 s66, s66, {L_OW}")
    A(f"v_add_u32 v{V_A2}, s66, v{V_PA}")
    A(f"s_lshl_b32 s70, s{S_W}, 8")
    A(f"s_add_u32 s70, s70, s{S_I}")
    A(f"s_mul_i32 s70, s70, 768")
    A(f"s_add_u32 s70, s70, {WS_OX}")
    A(f"s_mov_b32 s{S_SPIN}, {cfg['spin']}")
    A("s_waitcnt lgkmcnt(0)")
    A("s_barrier")
    C("wave j < 3 publishes the record of piece j")
    A(f"s_cmp_eq_u32 s{S_W}, 3")
    A("s_cbranch_scc1 L_nopub")
    publish_record(V_X)
    L("L_nopub")
    g.stamp("record published")
    A("s_cmp_ge_u32 s2, 200")
    A("s_cbranch_scc1 L_stage3")
    C("---- stage 2 ----")
    R = V_X + 16
    WA = V_A; OBR = V_X + 48; D0 = V_X + 72; D1 = V_X + 76
    A("s_cmp_ge_u32 s2, 160")
    A("s_cbranch_scc1 L_ffn")
    C("wo tile: wave w gathers the six records of (batch w, head rb)")
    A(f"s_lshl_b32 s70, s{S_W}, 5")
    A(f"s_add_u32 s70, s70, s{S_RB}")
    A(f"s_mul_i32 s70, s70, {6*768}")
    A(f"s_add_u32 s70, s70, {WS_OX}")
    def opoll():
        for k in range(6):
            A(f"buffer_load_dwordx4 v[{R+4*k}:{R+4*k+3}], v{V_PA}, s[{S_WS}:{S_WS+3}], s70 offen offset:{768*k} sc1")
    def t2_operands(npoll):
        A(f"v_lshrrev_b32 v{V_T}, 4, v{V_LANE}")
        A(f"v_bfe_u32 v{V_U}, v{V_LANE}, 2, 2")
        A(f"v_lshl_add_u32 v{V_S0}, v{V_T}, 2, v{V_U}")
        A(f"v_and_b32 v{V_S1}, 7, v{V_S0}")
        A(f"s_lshl_b32 s66, s{S_W}, 1")
        A(f"v_xor_b32 v{V_S1}, s66, v{V_S1}")
        A(f"v_lshlrev_b32 v{V_S1}, 5, v{V_S1}")
        A(f"v_lshl_add_u32 v{V_S1}, v{V_S0}, 8, v{V_S1}")
        A(f"v_and_b32 v{V_U}, 3, v{V_LANE}")
        A(f"v_lshl_add_u32 v{V_T2E}, v{V_U}, 3, v{V_S1}")
        A(f"v_xor_b32 v{V_T2O}, 32, v{V_T2E}")
        A(f"v_mul_u32_u24 v{V_A3}, {OBP}, v{V_U}")
        A(f"v_lshl_add_u32 v{V_A3}, v{V_T}, 3, v{V_A3}")
        A(f"v_add_u32 v{V_A3}, {L_OB}, v{V_A3}")
        A(f"v_lshlrev_b32 v{V_QA}, 9, v{V_U}")
        A(f"v_lshl_add_u32 v{V_QA}, v{V_T}, 4, v{V_QA}")
        A(f"v_and_b32 v{V_S0}, 4, v{V_LANE}")
        A(f"v_lshl_add_u32 v{V_QA}, v{V_S0}, 4, v{V_QA}")
        A(f"v_cmp_ne_u32 s[68:69], 0, v{V_S0}")
        A(f"s_lshl_b32 s74, s2, 11")
        A(f"s_lshl_b32 s66, s{S_W}, 7")
        A(f"s_add_u32 s74, s74, s66")
        A(f"s_add_u32 s74, s74, {WS_YX}")
        A(f"s_waitcnt vmcnt({npoll})")
        A("s_barrier")
        g.stamp("T2 landed")
        for s in range(6):
            for nt, va in ((0, V_T2E), (1, V_T2O)):
                r = WA + 8*s + 4*nt
                A(f"ds_read_b64_tr_b16 v[{r}:{r+1}], v{va} offset:{L_T+8192*s}")
                A(f"ds_read_b64_tr_b16 v[{r+2}:{r+3}], v{va} offset:{L_T+8192*s+4096}")
    opoll()
    A(f"s_mul_i32 s66, s{S_W}, {OBP}")
    A(f"v_lshrrev_b32 v{V_A2}, 1, v{V_PA}")
    A(f"v_add_u32 v{V_A2}, s66, v{V_A2}")
    t2_operands(6)
    A("s_branch L_ochk")
    L("L_opoll")
    opoll()
    A(f"s_sub_u32 s{S_SPIN}, s{S_SPIN}, 1")
    A("s_cbranch_scc1 L_end")
    L("L_ochk")
    for k in range(6):
        A(f"s_waitcnt vmcnt({5-k})")
        chk4(R+4*k, k == 0)
    chkend()
    A("s_nop 1")
    A("s_cbranch_vccnz L_opoll")
    g.stamp("records gathered")
    for k in range(6): strip4(R+4*k)
    for a, b in ((0, 1), (2, 3), (4, 5), (0, 2), (0, 4)):
        for k in range(0, 4, 2):
            A(f"v_pk_add_f32 v[{R+4*a+k}:{R+4*a+k+1}], v[{R+4*a+k}:{R+4*a+k+1}], v[{R+4*b+k}:{R+4*b+k+1}]")
    A(f"v_cvt_pk_bf16_f32 v{R}, v{R}, v{R+1}")
    A(f"v_cvt_pk_bf16_f32 v{R+1}, v{R+2}, v{R+3}")
    A(f"ds_write_b64 v{V_A2}, v[{R}:{R+1}] offset:{L_OB}")
    A("s_branch L_proj2")
    L("L_ffn")
    C("w2 tile: wave w gathers the h partials of batch w: lane = u + 8*wq + 32*jj; u<4: kh 0, else kh 1 mirrored")
    A(f"v_and_b32 v{V_U}, 7, v{V_LANE}")
    A(f"v_lshrrev_b32 v{V_S0}, 2, v{V_U}")
    A(f"v_lshrrev_b32 v{V_T}, 5, v{V_LANE}")
    A(f"v_bfe_u32 v{V_S1}, v{V_LANE}, 3, 2")
    A(f"v_lshlrev_b32 v{V_PA}, 10, v{V_S0}")
    A(f"v_lshl_add_u32 v{V_PA}, v{V_S1}, 8, v{V_PA}")
    A(f"v_mul_u32_u24 v{V_S0}, 7, v{V_S0}")
    A(f"v_xor_b32 v{V_S0}, v{V_S0}, v{V_U}")
    A(f"v_lshl_add_u32 v{V_PA}, v{V_S0}, 4, v{V_PA}")
    A(f"v_lshl_add_u32 v{V_MLA}, v{V_T}, 11, v{V_PA}")
    A(f"s_mul_i32 s70, s{S_RB}, {6*1024}")
    A(f"s_lshl_b32 s66, s{S_W}, 6")
    A(f"s_add_u32 s70, s70, s66")
    A(f"s_add_u32 s70, s70, {WS_QX}")
    A(f"s_add_u32 s71, s70, 4096")
    A(f"v_lshlrev_b32 v{V_A2}, 5, v{V_S1}")
    A(f"v_lshl_add_u32 v{V_A2}, v{V_S0}, 3, v{V_A2}")
    A(f"s_mul_i32 s66, s{S_W}, {OBP}")
    A(f"v_add_u32 v{V_A2}, s66, v{V_A2}")
    A(f"v_lshl_add_u32 v{V_OWA}, v{V_T}, 7, v{V_A2}")
    def hpoll():
        A(f"buffer_load_dwordx4 v[{R}:{R+3}], v{V_MLA}, s[{S_WS}:{S_WS+3}], s70 offen sc1")
        A(f"buffer_load_dwordx4 v[{R+4}:{R+7}], v{V_PA}, s[{S_WS}:{S_WS+3}], s71 offen sc1")
    hpoll()
    t2_operands(2)
    A("s_branch L_hchk")
    L("L_hpoll")
    hpoll()
    A(f"s_sub_u32 s{S_SPIN}, s{S_SPIN}, 1")
    A("s_cbranch_scc1 L_end")
    L("L_hchk")
    A("s_waitcnt vmcnt(0)")
    chk4(R, True); chk4(R+4, False)
    chkend()
    A("s_nop 1")
    A("s_cbranch_vccnz L_hpoll")
    strip4(R); strip4(R+4)
    for k in range(8):
        A(f"v_add_f32_dpp v{R+k}, v{R+k}, v{R+k} row_half_mirror row_mask:0xf bank_mask:0xf")
    for k in range(8):
        A(f"v_max_f32 v{R+k}, 0, v{R+k}")
    for j in range(2):
        A(f"v_cvt_pk_bf16_f32 v{R+4*j}, v{R+4*j}, v{R+4*j+1}")
        A(f"v_cvt_pk_bf16_f32 v{R+4*j+1}, v{R+4*j+2}, v{R+4*j+3}")
    A(f"ds_write_b64 v{V_OWA}, v[{R}:{R+1}] offset:{L_OB}")
    A(f"ds_write_b64 v{V_A2}, v[{R+4}:{R+5}] offset:{L_OB+256}")
    L("L_proj2")
    A("s_waitcnt lgkmcnt(0)")
    A("s_barrier")
    for s in range(6):
        A(f"ds_read2_b64 v[{OBR+4*s}:{OBR+4*s+3}], v{V_A3} offset0:{8*s} offset1:{8*s+4}")
    for m in range(6):
        A(f"s_waitcnt lgkmcnt({5-m})")
        for nt, d in ((0, D0), (1, D1)):
            r = WA + 8*m + 4*nt
            A(f"v_mfma_f32_16x16x32_bf16 v[{d}:{d+3}], v[{r}:{r+3}], v[{OBR+4*m}:{OBR+4*m+3}], " + ("0" if m == 0 else f"v[{d}:{d+3}]"))
    A("s_mov_b32 exec_lo, 0x00ff00ff")
    A("s_mov_b32 exec_hi, 0x00ff00ff")
    A("s_nop 5")
    for k in range(4):
        A(f"v_cndmask_b32 v{D0+k}, v{D0+k}, v{D1+k}, s[68:69]")
    tag4(D0)
    A(f"buffer_store_dwordx4 v[{D0}:{D0+3}], v{V_QA}, s[{S_WS}:{S_WS+3}], s74 offen sc1")
    A("s_mov_b64 exec, -1")
    g.stamp("stage2 published")
    A("s_branch L_fin")
    L("L_stage3")
    C("---- stage 3: WGs 216..255, waves 2,3: consumer c = (wg-216)*2 + (w-2) ----")
    A("s_cmp_lt_u32 s2, 216")
    A("s_cbranch_scc1 L_fin")
    A(f"s_cmp_lt_u32 s{S_W}, 2")
    A("s_cbranch_scc1 L_fin")
    A("s_sub_u32 s66, s2, 217")
    A("s_lshl_b32 s66, s66, 1")
    A(f"s_add_u32 s66, s66, s{S_W}")
    A("s_mul_i32 s67, s66, 3277")
    A("s_lshr_b32 s67, s67, 16")
    A("s_mul_i32 s68, s67, 20")
    A("s_sub_u32 s68, s66, s68")
    A("s_lshr_b32 s69, s68, 2")
    A("s_and_b32 s70, s68, 3")
    A("s_lshl_b32 s69, s69, 11")
    A("s_lshl_b32 s70, s70, 7")
    A("s_add_u32 s70, s70, s69")
    A("s_lshl_b32 s69, s67, 9")
    A("s_add_u32 s70, s70, s69")
    A(f"s_add_u32 s70, s70, {WS_YX}")
    for t in range(1, 5):
        A(f"s_add_u32 s{70+t}, s70, {t*8*5*2048}")
    A(f"v_lshrrev_b32 v{V_T}, 3, v{V_LANE}")
    A(f"v_and_b32 v{V_U}, 7, v{V_LANE}")
    A(f"v_mul_u32_u24 v{V_PA}, {5*2048}, v{V_T}")
    A(f"v_lshl_add_u32 v{V_PA}, v{V_U}, 4, v{V_PA}")
    A(f"v_bfe_u32 v{V_S0}, v{V_LANE}, 4, 1")
    A(f"v_bfe_u32 v{V_S1}, v{V_LANE}, 5, 1")
    A(f"v_lshl_add_u32 v{V_S0}, v{V_S0}, 1, v{V_S1}")
    A(f"v_lshl_add_u32 v{V_S0}, v{V_U}, 2, v{V_S0}")
    A(f"v_lshlrev_b32 v{V_A2}, 1, v{V_S0}")
    A("s_mul_i32 s67, s67, 1280")
    A("s_lshl_b32 s68, s68, 6")
    A("s_add_u32 s75, s67, s68")
    A(f"buffer_load_ushort v{V_A3}, v{V_A2}, s[{S_X}:{S_X+3}], s75 offen")
    A(f"s_mov_b32 s{S_OUT+2}, 5120")
    A(f"s_mov_b32 s{S_OUT+3}, 0x00020000")
    L("L_ypoll")
    for t in range(5):
        A(f"buffer_load_dwordx4 v[{R+4*t}:{R+4*t+3}], v{V_PA}, s[{S_WS}:{S_WS+3}], s{70+t} offen sc1")
    A(f"s_sub_u32 s{S_SPIN}, s{S_SPIN}, 1")
    A("s_cbranch_scc1 L_end")
    for t in range(5):
        A(f"s_waitcnt vmcnt({4-t})")
        chk4(R+4*t, t == 0)
    chkend()
    A("s_nop 1")
    A("s_cbranch_vccnz L_ypoll")
    g.stamp("y gathered")
    for t in range(5): strip4(R+4*t)
    for a, b in ((0, 1), (2, 3), (0, 2)):
        for k in range(0, 4, 2):
            A(f"v_pk_add_f32 v[{R+4*a+k}:{R+4*a+k+1}], v[{R+4*a+k}:{R+4*a+k+1}], v[{R+4*b+k}:{R+4*b+k+1}]")
    Z = R+16
    A(f"v_permlane32_swap_b32 v{Z}, v{Z+1}")
    A(f"v_permlane32_swap_b32 v{Z+2}, v{Z+3}")
    A(f"v_permlane32_swap_b32 v{R}, v{R+1}")
    A(f"v_permlane32_swap_b32 v{R+2}, v{R+3}")
    A(f"v_add_f32 v{Z}, v{Z}, v{Z+1}")
    A(f"v_add_f32 v{Z+2}, v{Z+2}, v{Z+3}")
    A(f"v_add_f32 v{R}, v{R}, v{R+1}")
    A(f"v_add_f32 v{R+2}, v{R+2}, v{R+3}")
    A(f"v_permlane16_swap_b32 v{Z}, v{Z+2}")
    A("s_nop 0")
    A(f"v_permlane16_swap_b32 v{R}, v{R+2}")
    A(f"v_add_f32 v{Z}, v{Z}, v{Z+2}")
    A("s_nop 0")
    A(f"v_add_f32 v{R}, v{R}, v{R+2}")
    A(f"v_add_f32_dpp v{Z}, v{Z}, v{Z} row_ror:8 row_mask:0xf bank_mask:0xf")
    A("s_nop 0")
    A(f"v_add_f32_dpp v{R}, v{R}, v{R} row_ror:8 row_mask:0xf bank_mask:0xf")
    A(f"v_lshlrev_b32 v{V_A3}, 16, v{V_A3}")
    A(f"v_cvt_pk_bf16_f32 v{V_T}, v{R}, v{Z}")
    A(f"v_and_b32 v{Z}, 0xffff0000, v{V_T}")
    A(f"v_lshlrev_b32 v{R}, 16, v{V_T}")
    A(f"v_mul_f32 v{V_U}, {f32(-LOG2E)}, v{Z}")
    A(f"v_exp_f32 v{V_U}, v{V_U}")
    A("s_nop 0")
    A(f"v_add_f32 v{V_U}, 1.0, v{V_U}")
    A(f"v_rcp_f32 v{V_U}, v{V_U}")
    A("s_nop 0")
    A(f"v_mul_f32 v{Z}, v{Z}, v{V_U}")
    A(f"v_cvt_pk_bf16_f32 v{V_T}, v{Z}, v{Z}")
    A(f"v_and_b32 v{Z}, 0xffff0000, v{V_T}")
    A(f"v_mul_f32 v{R}, v{R}, v{Z}")
    A(f"v_cvt_pk_bf16_f32 v{V_T}, v{R}, v{R}")
    A(f"v_and_b32 v{R}, 0xffff0000, v{V_T}")
    A(f"v_add_f32 v{R}, v{V_A3}, v{R}")
    A(f"v_cvt_pk_bf16_f32 v{V_T}, v{R}, v{R}")
    A("s_mov_b32 exec_lo, 0x00ff00ff")
    A("s_mov_b32 exec_hi, 0x00ff00ff")
    A(f"buffer_store_short v{V_T}, v{V_A2}, s[{S_OUT}:{S_OUT+3}], s75 offen {cfg['outpol']}")
    A("s_cmp_lg_u32 s66, 0")
    A("s_cbranch_scc1 L_noe")
    C("every workgroup has read the epoch word by now: advance it for the next launch")
    A("s_mov_b64 exec, 1")
    A(f"v_mov_b32 v{V_U}, {WS_E}")
    A(f"buffer_store_dword v{V_TAG}, v{V_U}, s[{S_WS}:{S_WS+3}], 0 offen {cfg['outpol']}")
    L("L_noe")
    A("s_mov_b64 exec, -1")
    g.stamp("out stored")
    L("L_fin")
    if cfg.get("diag_total"):
        L("L_dspin")
        A("s_memrealtime s[96:97]")
        A("s_waitcnt lgkmcnt(0)")
        A("s_sub_u32 s96, s96, s98")
        A(f"s_cmp_lt_u32 s96, {cfg['diag_total']}")
        A("s_cbranch_scc1 L_dspin")
    if cfg["stamps"]:
        A("s_waitcnt vmcnt(0)")
        A("s_memrealtime s[96:97]")
        A("s_getreg_b32 s66, hwreg(HW_REG_XCC_ID)")
        A("s_waitcnt lgkmcnt(0)")
        A(f"v_writelane_b32 v{V_ST}, s96, 61")
        A(f"v_writelane_b32 v{V_ST}, s98, 62")
        A(f"v_writelane_b32 v{V_ST}, s66, 63")
        A(f"s_sub_u32 s66, {cfg['spin']}, s{S_SPIN}")
        A(f"v_writelane_b32 v{V_ST}, s66, 60")
        A("s_lshl_b32 s66, s2, 10")
        A(f"s_add_u32 s66, s66, {WS_DBG}")
        A(f"v_lshlrev_b32 v{V_T}, 2, v0")
        A(f"buffer_store_dword v{V_ST}, v{V_T}, s[{S_WS}:{S_WS+3}], s66 offen")
        if cfg.get("trace"):
            A(f"s_add_u32 s66, s66, {256*1024}")
            A(f"buffer_store_dword v{V_TR}, v{V_T}, s[{S_WS}:{S_WS+3}], s66 offen")
    L("L_end")
    A("s_endpgm")

    def ml_offset(padd):
        A(f"s_add_u32 s70, s{S_PCUR}, {padd}")
        A(f"s_mul_i32 s70, s70, 43691")
        A(f"s_lshr_b32 s70, s70, 18")
        A(f"s_mul_i32 s70, s70, 384")
        A(f"s_add_u32 s70, s70, {WS_ML}")
    def ml_load():
        A(f"buffer_load_dwordx4 v[{V_MLD}:{V_MLD+3}], v{V_MLA}, s[{S_WS}:{S_WS+3}], s70 offen sc1")
    RET = f"s_setpc_b64 s[{S_RET}:{S_RET+1}]"
    C("---- K-loop events: end of a piece (0, 1), prefetch of the first region's (m,l) table (2) ----")
    L("H_K")
    A(f"s_cmp_lt_u32 s{S_EID}, 2")
    A("s_cbranch_scc1 H_K1")
    A(f"s_sub_u32 s{S_PCUR}, s{S_PCUR}, 512")
    ml_offset(0)
    A(f"s_add_u32 s{S_PCUR}, s{S_PCUR}, 512")
    ml_load()
    A(f"s_movk_i32 s{S_EVT}, 0x7fff")
    A(RET)
    L("H_K1")
    A(f"v_add_u32 v{V_QA}, 384, v{V_QA}")
    for j in range(3):
        A(f"ds_read_b128 v[{V_Q+4*j}:{V_Q+4*j+3}], v{V_QA} offset:{128*j}")
    A(f"s_cmp_eq_u32 s{S_EID}, 0")
    A(f"s_cselect_b32 s{S_EVT}, s{S_B2}, 120")
    A(f"s_add_u32 s{S_EID}, s{S_EID}, 1")
    L("H_KS")
    C("wave-level (max, sum) of the piece just finished -> table entry (piece, wave)")
    A(f"v_mov_b32 v{V_T}, v{V_M}")
    allreduce(V_T, V_U, "v_max_f32", ("row_half_mirror", "row_ror:8"), SW2)
    A(f"v_sub_f32 v{V_M}, v{V_M}, v{V_T}")
    A(f"v_mul_f32 v{V_M}, {f32(LOG2E)}, v{V_M}")
    A(f"v_exp_f32 v{V_M}, v{V_M}")
    A(f"s_lshr_b32 s66, s{S_PCUR}, 8")
    A(f"v_mul_f32 v{V_L}, v{V_L}, v{V_M}")
    allreduce(V_L, V_U, "v_add_f32", ("row_half_mirror", "row_ror:8"), SW2)
    A(f"s_lshl_b32 s67, s66, 6")
    A(f"s_add_u32 s67, s67, {L_ML}")
    A(f"s_lshl_b32 s68, s{S_W}, 4")
    A(f"s_add_u32 s68, s68, s67")
    A(f"s_lshl_b32 s66, s66, 2")
    A(f"s_add_u32 s66, s66, {L_CN}")
    A(f"v_mov_b32 v{V_PD}, v{V_T}")
    A(f"v_mov_b32 v{V_PD+1}, v{V_TAG}")
    A(f"v_mov_b32 v{V_PD+2}, v{V_L}")
    A(f"v_mov_b32 v{V_PD+3}, v{V_TAG}")
    A(f"v_mov_b32 v{V_T}, s68")
    A(f"v_mov_b32 v{V_S0}, s66")
    A(f"v_mov_b32 v{V_U}, 1")
    A("s_mov_b64 exec, 1")
    A(f"ds_write_b128 v{V_T}, v[{V_PD}:{V_PD+3}]")
    A(f"ds_add_rtn_u32 v{V_U}, v{V_S0}, v{V_U}")
    A("s_mov_b64 exec, -1")
    A(f"v_mov_b32 v{V_L}, 0")
    A(f"v_mov_b32 v{V_M}, 0xff7f0000")
    A(f"s_lshl_b32 s70, s{S_PCUR}, 6")
    A(f"s_add_u32 s70, s70, {WS_ML}")
    A(f"s_add_u32 s{S_PCUR}, s{S_PCUR}, 256")
    A("s_waitcnt lgkmcnt(0)")
    A(f"v_readfirstlane_b32 s68, v{V_U}")
    A("s_nop 3")
    A(f"s_cmp_lg_u32 s68, 3")
    A("s_cbranch_scc1 H_KS1")
    A(f"s_cmp_ge_u32 s{S_PCUR}, 768")
    A("s_cbranch_scc1 H_KS1")
    C("the last wave to arrive hands the four entries on")
    L("H_KS0")
    A("s_mov_b64 exec, 15")
    A(f"v_lshlrev_b32 v{V_T}, 4, v{V_LANE}")
    A(f"v_add_u32 v{V_U}, s67, v{V_T}")
    A(f"ds_read_b128 v[{V_PD}:{V_PD+3}], v{V_U}")
    A("s_waitcnt lgkmcnt(0)")
    A(f"buffer_store_dwordx4 v[{V_PD}:{V_PD+3}], v{V_T}, s[{S_WS}:{S_WS+3}], s70 offen sc1")
    A("s_mov_b64 exec, -1")
    L("H_KS1")
    A(RET)
    C("---- V-loop events: even id = prefetch next region's table, odd id = end of a piece ----")
    L("H_V")
    A(f"s_cmp_lg_i32 s{S_EID}, -1")
    A("s_cbranch_scc1 H_V0")
    C("two units into V: wave 3's score and counter stores have completed, so the last piece's entries may follow")
    A(f"s_mov_b32 s{S_EID}, 0")
    A(f"s_sub_u32 s{S_EVT}, s{S_B1}, 8")
    A(f"s_cmp_lg_u32 s{S_W}, 3")
    A("s_cbranch_scc1 H_KS1")
    A(f"s_mov_b32 s67, {L_ML + 128}")
    A(f"s_add_u32 s70, s{S_I}, 512")
    A(f"s_lshl_b32 s70, s70, 6")
    A(f"s_add_u32 s70, s70, {WS_ML}")
    A("s_branch H_KS0")
    L("H_V0")
    A(f"s_bitcmp1_b32 s{S_EID}, 0")
    A("s_cbranch_scc1 H_V1")
    ml_offset(256)
    ml_load()
    A(f"s_add_u32 s{S_EVT}, s{S_EVT}, 8")
    A(f"s_add_u32 s{S_EID}, s{S_EID}, 1")
    A(RET)
    L("H_V1")
    wave_reduce()
    A(f"v_add_u32 v{V_OWA}, 3072, v{V_OWA}")
    A("s_waitcnt lgkmcnt(0)")
    for k in range(24):
        A(f"v_mov_b32 v{V_ACC+k}, 0")
    A(f"s_add_u32 s{S_PCUR}, s{S_PCUR}, 256")
    A(f"s_sub_u32 s66, s{S_B2}, 8")
    A(f"s_cmp_eq_u32 s{S_EID}, 1")
    A(f"s_cselect_b32 s{S_EVT}, s66, 0x7fff")
    A(f"s_add_u32 s{S_EID}, s{S_EID}, 1")
    L("H_VS")
    C("region-level max and 1/sum from the 24 table entries")
    A(f"v_xor_b32 v{V_S0}, v{V_MLD+1}, v{V_TAG}")
    A(f"v_bitop3_b32 v{V_S0}, v{V_MLD+3}, v{V_TAG}, v{V_S0} bitop3:0xbe")
    A(f"v_cmp_ne_u32 vcc, 0, v{V_S0}")
    A("s_nop 1")
    A("s_cbranch_vccz H_VS1")
    A(f"s_sub_u32 s{S_SPIN}, s{S_SPIN}, 1")
    A("s_cbranch_scc1 L_end")
    ml_offset(0)
    ml_load()
    A("s_waitcnt vmcnt(0)")
    A("s_branch H_VS")
    L("H_VS1")
    A(f"v_mov_b32 v{V_M}, v{V_MLD}")
    allreduce(V_M, V_U, "v_max_f32", DPP4, SW2[:1])
    A(f"v_sub_f32 v{V_T}, v{V_MLD}, v{V_M}")
    A(f"v_mul_f32 v{V_T}, {f32(LOG2E)}, v{V_T}")
    A(f"v_exp_f32 v{V_T}, v{V_T}")
    A(f"v_mov_b32 v{V_L}, 0")
    A("s_mov_b32 exec_lo, 0x00ffffff")
    A("s_mov_b32 exec_hi, 0x00ffffff")
    A(f"v_mul_f32 v{V_L}, v{V_T}, v{V_MLD+2}")
    A("s_mov_b64 exec, -1")
    allreduce(V_L, V_U, "v_add_f32", DPP4, SW2[:1])
    A(f"v_rcp_f32 v{V_T}, v{V_L}")
    A("s_nop 0")
    A(f"v_fma_f32 v{V_U}, -v{V_L}, v{V_T}, 1.0")
    A(f"v_fma_f32 v{V_L}, v{V_U}, v{V_T}, v{V_T}")
    A(RET)
    o.append('.section .rodata,"a"')
    o.append(".p2align 6")
    o.append(f".amdhsa_kernel {name}")
    o.append(f"  .amdhsa_next_free_vgpr {V_END}")
    o.append("  .amdhsa_next_free_sgpr 102")
    o.append(f"  .amdhsa_accum_offset {V_END}")
    o.append("  .amdhsa_group_segment_fixed_size 0")
    o.append("  .amdhsa_kernarg_size 88")
    o.append("  .amdhsa_user_sgpr_count 2")
    o.append("  .amdhsa_user_sgpr_kernarg_segment_ptr 1")
    o.append("  .amdhsa_system_sgpr_workgroup_id_x 1")
    o.append("  .amdhsa_float_denorm_mode_32 3")
    o.append(".end_amdhsa_kernel")
    assert L_END <= cfg["lds"], L_END
    return "\n".join(o) + "\n"

if __name__ == "__main__":
    out = sys.argv[1]
    kw = json.loads(sys.argv[2]) if len(sys.argv) > 2 else {}
    open(out, "w").write(build(**kw))
```
